```python
import torch

def _softmax(x, axis=-1):
    return torch.softmax(x, dim=axis)
def _gelu(x):
    return torch.nn.functional.gelu(x, approximate="tanh")
def _silu(x):
    return torch.nn.functional.silu(x)
def _sigmoid(x):
    return torch.sigmoid(x)
def _layernorm(x, axis=-1, eps=1e-5):
    m = x.mean(dim=axis, keepdim=True)
    v = x.var(dim=axis, keepdim=True, unbiased=False)
    return (x - m) / torch.sqrt(v + eps)
def _scatter_add(tgt, idx, src, axis=0):
    return tgt.clone().index_add_(axis, idx, src)
def _segment_sum(src, seg, n):
    out = torch.zeros((n,) + src.shape[1:], dtype=src.dtype)
    return out.index_add_(0, seg, src)
def _pad(x, pw):
    flat = tuple(v for pair in reversed(pw) for v in pair)
    return torch.nn.functional.pad(x, flat)

kernel_name = 'sequential_preLN__sliding_block_cached__dense_activation_relu__decode'

def setup_inputs():

    _w = (lambda a: (lambda t: t.to(torch.bfloat16) if t.is_floating_point() else t)(torch.as_tensor(a)))
    def _A_setup():
        B, Sq, D = 1, 1, 640
        Hq, Hkv, Sk, Dh = 32, 32, 32768, 192
        assert Hq % Hkv == 0, (Hq, Hkv)
        return {
            "x": _w((lambda *s: torch.randn(*s, dtype=torch.bfloat16) * 0.05)(B, Sq, D)),
            "k_cache": _w((lambda *s: torch.randn(*s, dtype=torch.bfloat16) * 3.2)(B, Hkv, Sk, Dh)),
            "v_cache": _w((lambda *s: torch.randn(*s, dtype=torch.bfloat16) * 0.4)(B, Hkv, Sk, Dh)),
            "wq": _w((lambda *s: torch.randn(*s, dtype=torch.bfloat16) * 3.2)(D, Hq * Dh) * (D ** -0.5)),
            "wo": _w((lambda *s: torch.randn(*s, dtype=torch.bfloat16) * 0.4)(Hq * Dh, D) * ((Hq * Dh) ** -0.5)),
        }
    _A_in = _A_setup()

    def _B_setup():
        B, S, D, Dff = 1, 1, 640, 1536
        return {
            "x": _w((lambda *s: torch.randn(*s, dtype=torch.bfloat16) * 0.05)(B, S, D)),
            "w1": _w((lambda *s: torch.randn(*s, dtype=torch.bfloat16) * 0.05)(D, Dff)),
            "w2": _w((lambda *s: torch.randn(*s, dtype=torch.bfloat16) * 0.05)(Dff, D)),
        }
    _B_in = _B_setup()

    return {
        "A_x": _A_in["x"],
        "A_k_cache": _A_in["k_cache"],
        "A_v_cache": _A_in["v_cache"],
        "A_wq": _A_in["wq"],
        "A_wo": _A_in["wo"],
        "B_x": _B_in["x"],
        "B_w1": _B_in["w1"],
        "B_w2": _B_in["w2"],
    }

def reference(A_x, A_k_cache, A_v_cache, A_wq, A_wo, B_x, B_w1, B_w2):
    def _A_ref(x, k_cache, v_cache, wq, wo):
        B, Sq, D = x.shape
        Hq, Dh = 32, 192
        Hkv, Sk = k_cache.shape[1], k_cache.shape[2]
        W = min(4096, max(256, Sk // 4))
        rep = Hq // Hkv
        q = (lambda x, *d: x.permute(*d))((x @ wq).reshape(B, Sq, Hq, Dh), 0, 2, 1, 3)
        k = (lambda x, n, axis: torch.repeat_interleave(x, n, dim=axis))(k_cache[:, :, Sk - W:, :], rep, axis=1)
        v = (lambda x, n, axis: torch.repeat_interleave(x, n, dim=axis))(v_cache[:, :, Sk - W:, :], rep, axis=1)
        scores = torch.einsum("bhqd,bhkd->bhqk", q, k) * (Dh ** -0.5)
        p = _softmax(scores, axis=-1)
        o = torch.einsum("bhqk,bhkd->bhqd", p, v)
        return (lambda x, *d: x.permute(*d))(o, 0, 2, 1, 3).reshape(B, Sq, Hq * Dh) @ wo

    def _B_ref(x, w1, w2):
        h = torch.einsum("bsd,df->bsf", x, w1)
        zero = torch.zeros_like(h)
        h = torch.maximum(h, zero)
        return torch.einsum("bsf,fd->bsd", h, w2)

    x = A_x
    h = x + _A_ref(_layernorm(x, axis=-1), A_k_cache, A_v_cache, A_wq, A_wo)
    h2 = h + _B_ref(_layernorm(h, axis=-1), B_w1, B_w2)
    return h2
```

```python
import re

TRANS = ("v_exp_f32", "v_log_f32", "v_rcp_f32", "v_rsq_f32", "v_sqrt_f32", "v_sin_f32", "v_cos_f32")


def regs_of(op):
    op = op.strip()
    op = op.lstrip("-")
    m = re.fullmatch(r"abs\((.*)\)", op)
    if m:
        op = m.group(1)
    m = re.fullmatch(r"([vs])(\d+)", op)
    if m:
        return {(m.group(1), int(m.group(2)))}
    m = re.fullmatch(r"([vs])\[(\d+):(\d+)\]", op)
    if m:
        return {(m.group(1), k) for k in range(int(m.group(2)), int(m.group(3)) + 1)}
    if op in ("vcc", "vcc_lo", "vcc_hi"):
        return {("s", "vcc")}
    if op in ("exec", "exec_lo", "exec_hi"):
        return {("s", "exec")}
    if op == "m0":
        return {("s", "m0")}
    return set()


class Ins:
    def __init__(self, text):
        self.text = text
        body = text.split(";")[0].strip()
        parts = body.split(None, 1)
        self.mn = parts[0]
        rest = parts[1] if len(parts) > 1 else ""
        self.dpp = "_dpp" in self.mn
        toks = []
        depth = 0
        cur = ""
        for ch in rest:
            if ch == "[":
                depth += 1
            if ch == "]":
                depth -= 1
            if ch == "," and depth == 0:
                toks.append(cur.strip())
                cur = ""
            else:
                cur += ch
        if cur.strip():
            toks.append(cur.strip())
        if toks:
            toks[-1] = toks[-1].split()[0]
        self.ops = toks
        mn = self.mn
        self.mfma = mn.startswith("v_mfma")
        self.valu = mn.startswith("v_") and not self.mfma
        self.dot = mn.startswith("v_dot")
        self.trans = mn.replace("_e32", "").replace("_e64", "") in TRANS
        self.vmem = mn.startswith("global_") or mn.startswith("buffer_")
        self.ds = mn.startswith("ds_")
        self.salu = mn.startswith("s_")
        self.perm = mn.startswith("v_permlane")
        self.lane = mn.startswith("v_readlane") or mn.startswith("v_readfirstlane")
        R = [regs_of(t) for t in toks]
        self.dst = set()
        self.src = set()
        self.srcc = set()
        self.stdata = set()
        if self.mfma:
            self.dst = R[0]
            self.src = R[1] | R[2] | R[3]
            self.srcc = R[3]
        elif self.valu:
            if mn == "v_nop":
                pass
            elif self.perm or mn.startswith("v_swap"):
                self.dst = R[0] | R[1]
                self.src = R[0] | R[1]
            else:
                self.dst = R[0]
                for r in R[1:]:
                    self.src |= r
                if "fmac" in mn or "dot2c" in mn or self.dpp or "writelane" in mn:
                    self.src |= R[0]
                if "dot2c" in mn:
                    self.srcc = R[0]
                elif self.dot:
                    self.srcc = R[3]
        elif self.vmem:
            if "load" in mn and "lds" not in mn:
                self.dst = R[0]
                for r in R[1:]:
                    self.src |= r
            else:
                for r in R:
                    self.src |= r
                if "store" in mn and ("x3" in mn or "x4" in mn):
                    self.stdata = R[1] if mn.startswith("global_") else R[0]
        elif self.ds:
            if "read" in mn or "permute" in mn or "swizzle" in mn:
                self.dst = R[0]
                for r in R[1:]:
                    self.src |= r
            else:
                for r in R:
                    self.src |= r
        elif self.salu:
            if R and not mn.startswith("s_cmp") and not mn.startswith("s_cbranch"):
                self.dst = R[0]
                for r in R[1:]:
                    self.src |= r
            else:
                for r in R:
                    self.src |= r

    def states(self):
        if self.mn == "s_nop":
            return int(self.ops[0]) + 1
        return 1


def need(p, c):
    n = 0
    vd = {r for r in p.dst if r[0] == "v"}
    sd = {r for r in p.dst if r[0] == "s"}
    if p.mfma:
        if c.mfma:
            if vd & (c.src - c.srcc):
                n = max(n, 8)
            elif vd & c.srcc and vd != c.srcc:
                n = max(n, 6)
            elif vd & c.dst and not (vd & c.srcc):
                n = max(n, 6)
        elif (c.valu or c.vmem or c.ds) and vd & (c.src | c.dst):
            n = max(n, 8)
        if c.valu and p.srcc & c.dst:
            n = max(n, 3)
    if p.valu:
        if c.mfma and vd & c.src:
            n = max(n, 3 if p.dot else 2)
        if c.valu and c.dpp and vd & c.src:
            n = max(n, 2)
        if c.perm and vd & c.src:
            n = max(n, 2)
        if c.lane and vd & c.src:
            n = max(n, 1)
        if p.trans and c.valu and not c.trans and vd & c.src:
            n = max(n, 1)
        if p.trans and (c.ds or c.vmem) and vd & c.src:
            n = max(n, 1)
        if p.dot:
            if c.dot and c.mn == p.mn:
                if vd & (c.src - c.srcc):
                    n = max(n, 3)
            elif (c.valu or c.vmem or c.ds) and vd & (c.src | c.dst):
                n = max(n, 3)
        if sd:
            if c.valu and sd & c.src:
                n = max(n, 4 if c.lane or "writelane" in c.mn else 2)
            if c.vmem and sd & c.src:
                n = max(n, 5)
            if c.salu and sd & c.src:
                n = max(n, 1)
    if p.stdata and p.stdata & c.dst:
        n = max(n, 2)
    if p.salu and ("s", "m0") in p.dst and c.vmem and "lds" in c.text:
        n = max(n, 1)
    return n


class Asm:
    def __init__(self):
        self.lines = []
        self.hist = []
        self.vm = []
        self.nops = 0

    def raw(self, text):
        self.lines.append(text)

    def label(self, name):
        self.lines.append(name + ":")

    def barrier_hist(self):
        self.hist = []

    def __call__(self, text, tag=None):
        for t in text.split("\n"):
            t = t.strip()
            if not t:
                continue
            if t.endswith(":") or t.startswith(".") or t.startswith(";"):
                self.lines.append(t)
                continue
            c = Ins(t)
            dist = 0
            pad = 0
            for p in reversed(self.hist):
                pad = max(pad, need(p, c) - dist)
                dist += p.states()
                if dist >= 12:
                    break
            if pad > 0:
                nop = Ins(f"s_nop {pad-1}")
                self.lines.append("    " + nop.text)
                self.hist.append(nop)
                self.nops += pad
            self.lines.append("    " + t)
            self.hist.append(c)
            if c.vmem:
                self.vm.append(tag)
            if c.mn in ("s_branch", "s_endpgm"):
                self.hist = []

    def wait_vm(self, tag):
        idx = max(i for i, t in enumerate(self.vm) if t == tag)
        n = len(self.vm) - 1 - idx
        assert n <= 63
        self(f"s_waitcnt vmcnt({n})")

    def text(self):
        return "\n".join(self.lines) + "\n"
```

```python
import sys
sys.path.insert(0, "exp")
from asmlib import Asm

NAME = "sequential_preLN__sliding_block_cached__dense_activation_relu__decode"
HEADER = open("cdna_kernels/" + NAME + ".s.ref").read().split("; Override launch")[0]

EPOCH, FLAGS, QP, ML, OP, YP, FP, STAMP = 0, 0x1000, 0x2000, 0x42000, 0x46000, 0x78000, 0x84000, 0x100000
LQ, LML, LQP, LPV, LWO, LST, LF1, LDS_BYTES = 0, 512, 1024, 4096, 16384, 20480, 20992, 24576
KV, WR, S, ACC, A0, A1 = 40, 136, 8, 16, 28, 32
LOG2E, SCALE, EPS, INV640 = "0x3fb8aa3b", "0x3d93cd3a", "0x3727c5ac", "0x3acccccd"
DM = "row_mask:0xf bank_mask:0xf"
CAP = 30000


def gen(d=5, jb=15, pat="wint", b0=True, diag=False, prefetch=True):
    a = Asm()
    SS, SW, ST = {"blk": (64 * 3072, 8 * 3072, 3072), "wint": (64 * 3072, 3072, 8 * 3072),
                  "gint": (8 * 3072, 3072, 64 * 3072), "gint2": (3072, 8 * 3072, 64 * 3072)}[pat]

    def stamp(k):
        if diag:
            a(f"s_memrealtime s[{64+2*k}:{65+2*k}]")

    def finish():
        a("s_branch L_stamps" if diag else "s_endpgm")

    def masks():
        a("v_and_b32 v36, 1, v0")
        a("v_mov_b32 v37, 0xffff")
        a("v_lshlrev_b32 v36, 4, v36")
        a("v_lshlrev_b32 v36, v36, v37")
        a("v_bfe_u32 v37, v0, 1, 2")
        for r in range(4):
            a(f"v_cmp_eq_u32 vcc, {r}, v37")
            a(f"v_cndmask_b32 v{4+r}, 0, v36, vcc")

    def afrag(dst, pp):
        for r in range(4):
            a(f"v_and_b32 v{dst+r}, v{4+r}, v{pp}")

    def mfma(acc, A, B, first):
        c = "0" if first else f"v[{acc}:{acc+3}]"
        a(f"v_mfma_f32_16x16x32_bf16 v[{acc}:{acc+3}], v[{A}:{A+3}], v[{B}:{B+3}], {c}")

    def red8(op, regs):
        for ctl in ("quad_perm:[1,0,3,2]", "quad_perm:[2,3,0,1]", "row_half_mirror"):
            for r in regs:
                a(f"{op}_dpp v{r}, v{r}, v{r} {ctl} {DM}")

    def red_hi(op, regs):
        for ctl in (f"row_ror:8 {DM}", "row_bcast:15 row_mask:0xa bank_mask:0xf", "row_bcast:31 row_mask:0xc bank_mask:0xf"):
            for r in regs:
                a(f"{op}_dpp v{r}, v{r}, v{r} {ctl}")

    def ln_scalars(sm, sq, mb, rinv):
        a(f"v_mov_b32 v{rinv}, {INV640}")
        a(f"v_mul_f32 v{mb}, {sm}, v{rinv}")
        a(f"v_mul_f32 v{rinv}, {sq}, v{rinv}")
        a(f"v_fma_f32 v{rinv}, -v{mb}, v{mb}, v{rinv}")
        a(f"v_max_f32 v{rinv}, 0, v{rinv}")
        a(f"v_cvt_pk_bf16_f32 v{rinv}, v{mb}, v{rinv}")
        a(f"v_lshlrev_b32 v{mb}, 16, v{rinv}")
        a(f"v_and_b32 v{rinv}, 0xffff0000, v{rinv}")
        a(f"v_add_f32 v{rinv}, {EPS}, v{rinv}")
        a(f"v_cvt_pk_bf16_f32 v{rinv}, v{rinv}, v{rinv}")
        a(f"v_and_b32 v{rinv}, 0xffff0000, v{rinv}")
        a(f"v_sqrt_f32 v{rinv}, v{rinv}")
        a(f"v_cvt_pk_bf16_f32 v{rinv}, v{rinv}, v{rinv}")
        a(f"v_and_b32 v{rinv}, 0xffff0000, v{rinv}")
        a(f"v_rcp_f32 v{rinv}, v{rinv}")

    def exec_eo():
        a("s_mov_b32 exec_lo, 0x00ff00ff\ns_mov_b32 exec_hi, 0xff00ff00")

    def exec_all():
        a("s_mov_b64 exec, -1")

    def eo_addr(dst, base_s, half_stride):
        a(f"v_lshrrev_b32 v{dst}, 5, v0")
        a(f"v_mul_u32_u24 v{dst}, {half_stride}, v{dst}")
        a(f"v_lshl_add_u32 v{dst}, v3, 1, v{dst}")
        a(f"v_and_b32 v39, 16, v0")
        a(f"v_add3_u32 v{dst}, v{dst}, v39, {base_s}")

    def tree16(base):
        for step in (8, 4, 2):
            for k in range(0, step, 2):
                a(f"v_pk_add_f32 v[{base+k}:{base+k+1}], v[{base+k}:{base+k+1}], v[{base+step+k}:{base+step+k+1}]")
        a(f"v_add_f32 v{base}, v{base}, v{base+1}")

    def poll_head(lbl):
        a(f"s_mov_b32 s41, {CAP}")
        a(f"{lbl}:")

    def poll_tail(lbl, sleep=0):
        a(f"s_cbranch_vccz {lbl}_ok")
        if sleep:
            a(f"s_sleep {sleep}")
        a("s_sub_u32 s41, s41, 1")
        a(f"s_cbranch_scc0 {lbl}")
        a(f"{lbl}_ok:")

    def transpose_reduce(r):
        a(f"v_permlane32_swap_b32 v{r}, v{r+2}")
        a(f"v_permlane32_swap_b32 v{r+1}, v{r+3}")
        a(f"v_pk_add_f32 v[{r}:{r+1}], v[{r}:{r+1}], v[{r+2}:{r+3}]")
        a(f"v_permlane16_swap_b32 v{r}, v{r+1}")
        a(f"v_add_f32 v{r}, v{r}, v{r+1}")

    def eo_combine(acc):
        a(f"v_permlane32_swap_b32 v{acc}, v{acc+2}")
        a(f"v_permlane32_swap_b32 v{acc+1}, v{acc+3}")
        a(f"v_add_f32_dpp v{acc}, v{acc+2}, v{acc} row_ror:8 {DM}")
        a(f"v_add_f32_dpp v{acc+1}, v{acc+3}, v{acc+1} row_ror:8 {DM}")

    def bcast_gemv(pp, B, acc):
        for i in range(8):
            A = A0 if i % 2 == 0 else A1
            t = 36 + (i % 2)
            a(f"v_mov_b32_dpp v{t}, v{pp} row_newbcast:{i} row_mask:0xf bank_mask:0x3")
            a(f"v_mov_b32_dpp v{t}, v{pp} row_newbcast:{8+i} row_mask:0xf bank_mask:0xc")
            afrag(A, t)
            mfma(acc, A, B + 4 * i, i == 0)

    a.raw(HEADER.rstrip())
    a.raw(f"; @launch grid=(256,1,1) block=(640,1,1) lds={LDS_BYTES}")
    a.raw('.amdgcn_target "amdgcn-amd-amdhsa--gfx950"\n.text')
    a.raw(f".globl {NAME}_kernel\n.p2align 8\n.type {NAME}_kernel,@function\n{NAME}_kernel:")
    a("L_start:")
    stamp(0)
    a("s_cmp_ge_u32 s2, 256\ns_cbranch_scc1 L_end")
    a("s_load_dwordx16 s[4:19], s[0:1], 0")
    a("s_load_dwordx4 s[20:23], s[0:1], 64")
    a("s_load_dwordx2 s[24:25], s[0:1], 80")
    a("v_lshrrev_b32 v1, 6, v0")
    a("v_and_b32 v0, 63, v0")
    a("v_readfirstlane_b32 s26, v1")
    a("s_and_b32 s29, s2, 7\ns_lshr_b32 s30, s2, 3\ns_and_b32 s27, s30, 3\ns_lshl2_add_u32 s27, s29, s27\ns_lshr_b32 s28, s30, 2")
    a("v_lshrrev_b32 v2, 3, v0\nv_and_b32 v3, 7, v0\nv_lshlrev_b32 v3, 4, v3")
    a("s_cmp_lt_u32 s26, 8\ns_cbranch_scc1 L_stream")
    a("s_cmp_eq_u32 s26, 9\ns_cbranch_scc1 L_w9")

    a("s_setprio 3")
    a("s_mov_b32 s34, 122880\ns_mul_i32 s35, s27, 384\ns_mul_i32 s36, s28, 983040\ns_add_u32 s35, s35, s36\ns_mul_i32 s36, s28, 160\ns_movk_i32 s37, 12288")
    a("v_mad_u32_u24 v1, v2, s34, v3")
    a("v_lshlrev_b32 v36, 4, v0\nv_lshlrev_b32 v37, 2, v0\nv_mad_u32_u24 v38, v2, 20, s36")
    a("s_waitcnt lgkmcnt(0)")
    a("s_load_dword s40, s[24:25], 0")
    a("global_load_dwordx4 v[8:11], v36, s[4:5]", "x")
    a("global_load_dword v12, v37, s[4:5] offset:1024", "x")
    a("global_load_dwordx4 v[160:163], v38, s[4:5]", "x")
    a("global_load_dword v164, v38, s[4:5] offset:16", "x")
    a("s_add_u32 s10, s10, s35\ns_addc_u32 s11, s11, 0")
    for t in range(10):
        for j in range(3):
            r = KV + 12 * t + 4 * j
            a(f"global_load_dwordx4 v[{r}:{r+3}], v1, s[10:11] offset:{128*j} nt", ("wq", t))
        if t < 9:
            a("s_add_u32 s10, s10, s37\ns_addc_u32 s11, s11, 0")
    if b0:
        a("s_barrier")
    stamp(1)
    masks()
    eo_addr(1, LQP // 64 * 0, 768)
    a(f"v_add_u32 v1, {LQP}, v1")
    a("v_mov_b32 v13, 0\nv_mov_b32 v14, 0\ns_mov_b32 s34, 0x3f803f80")
    a.wait_vm("x")
    for k in range(5):
        a(f"v_dot2c_f32_bf16 v13, s34, v{8+k}")
        a(f"v_dot2c_f32_bf16 v14, v{8+k}, v{8+k}")
    red8("v_add_f32", (13, 14))
    red_hi("v_add_f32", (13, 14))
    a("v_readlane_b32 s34, v13, 63\nv_readlane_b32 s35, v14, 63")
    ln_scalars("s34", "s35", 13, 14)
    stamp(2)
    for k in range(5):
        a(f"v_lshlrev_b32 v8, 16, v{160+k}\nv_and_b32 v9, 0xffff0000, v{160+k}")
        a("v_sub_f32 v8, v8, v13\nv_sub_f32 v9, v9, v13")
        a("v_cvt_pk_bf16_f32 v9, v8, v9")
        a("v_lshlrev_b32 v8, 16, v9\nv_and_b32 v9, 0xffff0000, v9")
        a("v_mul_f32 v8, v8, v14\nv_mul_f32 v9, v9, v14")
        a("v_cvt_pk_bf16_f32 v8, v8, v8\nv_cvt_pk_bf16_f32 v9, v9, v9")
        afrag(A0, 8)
        afrag(A1, 9)
        a.wait_vm(("wq", 2 * k + 1))
        for h, A in ((0, A0), (1, A1)):
            t = 2 * k + h
            for j in range(3):
                mfma(ACC + 4 * j, A, KV + 12 * t + 4 * j, t == 0)
    a("s_waitcnt lgkmcnt(0)")
    a("s_mul_i32 s40, s40, 0x9e3779b1\ns_add_u32 s40, s40, 0x7f4a7c15")
    a(f"s_lshl_b32 s34, s27, 13\ns_add_u32 s34, s34, {QP + 4096}\ns_lshl_b32 s35, s28, 10\ns_add_u32 s35, s35, s34\ns_sub_u32 s35, s35, 4096")
    a("v_lshl_add_u32 v8, v0, 4, s35\nv_lshl_add_u32 v9, v0, 4, s34")
    a(f"v_lshlrev_b32 v10, 2, v0\nv_add_u32 v10, {LQP}, v10")
    exec_eo()
    for j in range(3):
        a(f"ds_write_b128 v1, v[{ACC+4*j}:{ACC+4*j+3}] offset:{256*j}")
    exec_all()
    a("s_waitcnt lgkmcnt(0)")
    for j in range(3):
        a(f"ds_read2st64_b32 v[{ACC+2*j}:{ACC+2*j+1}], v10 offset0:{j} offset1:{3+j}")
    a("v_mov_b32 v39, s40")
    a("s_waitcnt lgkmcnt(0)")
    for j in range(3):
        a(f"v_add_f32 v{36+j}, v{ACC+2*j}, v{ACC+2*j+1}")
    a("global_store_dwordx4 v8, v[36:39], s[24:25] sc1")
    stamp(3)
    poll_head("L_pq")
    for s in range(8):
        a(f"global_load_dwordx4 v[{KV+4*s}:{KV+4*s+3}], v9, s[24:25] offset:{1024*s-4096} sc1")
    a("s_waitcnt vmcnt(0)")
    T = [KV + 4 * s + 3 for s in range(8)]
    for op, r in (("min", 11), ("max", 12)):
        a(f"v_{op}3_u32 v{r}, v{T[0]}, v{T[1]}, v{T[2]}\nv_{op}3_u32 v{r}, v{r}, v{T[3]}, v{T[4]}\nv_{op}3_u32 v{r}, v{r}, v{T[5]}, v{T[6]}\nv_{op}_u32 v{r}, v{r}, v{T[7]}")
    a("v_xor_b32 v11, s40, v11\nv_xor_b32 v12, s40, v12\nv_or_b32 v11, v11, v12\nv_cmp_ne_u32 vcc, 0, v11")
    poll_tail("L_pq", 2)
    for s in range(1, 8):
        for j in range(3):
            a(f"v_add_f32 v{KV+j}, v{KV+j}, v{KV+4*s+j}")
    a(f"v_cvt_pk_bf16_f32 v{KV}, v{KV}, v{KV+1}\nv_cvt_pk_bf16_f32 v{KV+2}, v{KV+2}, v{KV+2}")
    a("v_lshlrev_b32 v10, 1, v0")
    a(f"ds_write_b16 v10, v{KV} offset:{LQ}\nds_write_b16_d16_hi v10, v{KV} offset:{LQ+128}\nds_write_b16 v10, v{KV+2} offset:{LQ+256}")
    a("s_waitcnt lgkmcnt(0)")
    stamp(4)
    a("s_barrier")
    stamp(5)
    a("s_barrier")
    a("s_branch L_helper_done")

    a("L_w9:")
    a("s_setprio 3")
    a("v_lshlrev_b32 v1, 4, v0")
    if prefetch:
        a("s_getpc_b64 s[34:35]\nL_pc:\ns_sub_u32 s34, s34, L_pc-L_start\ns_subb_u32 s35, s35, 0")
        a("s_lshl_b32 s36, s30, 10\nv_add_u32 v36, s36, v1")
        a("v_cmp_gt_u32 vcc, L_code_end-L_start-15, v36\ns_and_saveexec_b64 s[36:37], vcc\ns_cbranch_execz L_nopf")
        a("global_load_dwordx4 v[40:43], v36, s[34:35]")
        a("L_nopf:")
        exec_all()
    a("v_mov_b32 v8, -1\nv_mov_b32 v9, -1\nv_mov_b32 v10, -1\nv_mov_b32 v11, -1")
    a("s_lshl3_add_u32 s34, s27, s28")
    a(f"s_lshl_b32 s35, s34, 6\ns_add_u32 s35, s35, {ML}\nv_add_u32 v36, s35, v1")
    a(f"s_mul_i32 s35, s34, 768\ns_add_u32 s35, s35, {OP}\nv_add_u32 v37, s35, v1")
    a("s_waitcnt lgkmcnt(0)")
    a("s_load_dword s40, s[24:25], 0")
    a("s_mov_b64 exec, 15\nglobal_store_dwordx4 v36, v[8:11], s[24:25] sc1")
    a("s_mov_b32 exec_lo, -1\ns_mov_b32 exec_hi, 0xffff\nglobal_store_dwordx4 v37, v[8:11], s[24:25] sc1")
    exec_all()
    a("s_cmp_lt_u32 s2, 160\ns_cbranch_scc0 L_w9_notwo")
    a(f"s_bfe_u32 s34, s30, 0x10001\ns_lshl1_add_u32 s34, s29, s34\ns_mul_i32 s34, s34, 2560\ns_and_b32 s35, s30, 1\ns_lshl1_add_u32 s35, s28, s35\ns_lshl_b32 s35, s35, 8\ns_add_u32 s34, s34, s35\ns_add_u32 s34, s34, {YP}")
    a("v_add_u32 v36, s34, v1")
    a("s_mov_b64 exec, 0xffff\nglobal_store_dwordx4 v36, v[8:11], s[24:25] sc1")
    exec_all()
    a("s_branch L_w9_cleared")
    a("L_w9_notwo:")
    a("s_cmp_lt_u32 s2, 184\ns_cbranch_scc0 L_w9_cleared")
    a(f"s_sub_u32 s34, s2, 160\ns_mul_i32 s34, s34, 2560\ns_add_u32 s34, s34, {FP}\nv_add_u32 v36, s34, v1")
    a("global_store_dwordx4 v36, v[8:11], s[24:25] sc1\nglobal_store_dwordx4 v36, v[8:11], s[24:25] offset:1024 sc1")
    a("s_mov_b32 exec_hi, 0\nglobal_store_dwordx4 v36, v[8:11], s[24:25] offset:2048 sc1")
    exec_all()
    a("L_w9_cleared:")
    if b0:
        a("s_barrier")
    masks()
    a("s_waitcnt lgkmcnt(0)")
    a("s_mul_i32 s40, s40, 0x9e3779b1\ns_add_u32 s40, s40, 0x7f4a7c15")
    a(f"s_lshl_b32 s34, s2, 2\ns_add_u32 s34, s34, {FLAGS}\nv_mov_b32 v36, s34\nv_mov_b32 v37, s40")
    a("s_waitcnt vmcnt(0)")
    a("s_mov_b64 exec, 1\nglobal_store_dword v36, v37, s[24:25] sc1")
    exec_all()
    stamp(1)
    a(f"v_add_u32 v12, {FLAGS}, v1")
    a(f"s_lshl_b32 s34, s27, 9\ns_add_u32 s34, s34, {ML}\nv_lshl_add_u32 v13, v0, 3, s34")
    a("s_barrier")
    stamp(2)
    poll_head("L_pf")
    a("global_load_dwordx4 v[8:11], v12, s[24:25] sc1\ns_waitcnt vmcnt(0)")
    for k in range(4):
        a(f"v_xor_b32 v{8+k}, s40, v{8+k}")
    a("v_or3_b32 v8, v8, v9, v10\nv_or_b32 v8, v8, v11\nv_cmp_ne_u32 vcc, 0, v8")
    poll_tail("L_pf", 4)
    stamp(3)
    poll_head("L_pm")
    a("global_load_dwordx2 v[8:9], v13, s[24:25] sc1\ns_waitcnt vmcnt(0)")
    a("v_max_u32 v10, v8, v9\nv_cmp_eq_u32 vcc, -1, v10")
    poll_tail("L_pm", 4)
    a("v_mov_b32 v10, v8")
    red8("v_max_f32", (10,))
    red_hi("v_max_f32", (10,))
    a("v_readlane_b32 s34, v10, 63")
    a(f"v_subrev_f32 v8, s34, v8\nv_mul_f32 v8, {LOG2E}, v8\nv_exp_f32 v8, v8\nv_mul_f32 v9, v8, v9")
    red8("v_add_f32", (9,))
    red_hi("v_add_f32", (9,))
    a(f"v_rcp_f32 v9, v9\nv_mov_b32 v8, s34\nv_mov_b32 v10, {LML}")
    a("s_lshl_b64 exec, 1, 63\nds_write_b64 v10, v[8:9]")
    exec_all()
    a("s_waitcnt lgkmcnt(0)")
    stamp(4)
    a("s_barrier")
    a("L_helper_done:")
    a("s_setprio 0")
    a("s_sub_u32 s34, s2, 160\ns_cmp_lt_u32 s34, 24\ns_cbranch_scc1 L_ffn")
    finish()

    a("L_stream:")
    a.vm = []
    a("v_mul_u32_u24 v1, 384, v2\nv_add_u32 v1, v1, v3")
    a(f"s_mul_i32 s34, s27, 12582912\ns_mul_i32 s35, s28, {SS}\ns_add_u32 s34, s34, s35\ns_mul_i32 s35, s26, {SW}\ns_add_u32 s34, s34, s35\ns_add_u32 s34, s34, 11010048\ns_mov_b32 s37, {ST}")
    a("s_waitcnt lgkmcnt(0)")
    a("s_add_u32 s6, s6, s34\ns_addc_u32 s7, s7, 0\ns_add_u32 s8, s8, s34\ns_addc_u32 s9, s9, 0")
    if b0:
        a("s_barrier")
    stamp(1)
    landed = [-1]

    def kvload(n):
        if n >= d:
            a.wait_vm(("kv", n - d))
            landed[0] = max(landed[0], n - d)
        base = 6 if n < 24 else 8
        m = n % 24
        r = KV + 4 * m
        a(f"global_load_dwordx4 v[{r}:{r+3}], v1, s[{base}:{base+1}] offset:{128*(m%3)} nt", ("kv", n))
        if m % 3 == 2 and m < 23:
            a(f"s_add_u32 s{base}, s{base}, s37\ns_addc_u32 s{base+1}, s{base+1}, 0")

    def scores(t):
        a(f"v_mov_b32 v{S+t}, 0")
        for k in range(12):
            a(f"v_dot2c_f32_bf16 v{S+t}, v{KV+12*t+k}, v{ACC+k}")

    def pv(t):
        A = A0 if t % 2 == 0 else A1
        afrag(A, S + t)
        for j in range(3):
            mfma(ACC + 4 * j, A, KV + 12 * t + 4 * j, t == 0)

    for n in range(24):
        kvload(n)
        if n == d - 1:
            masks()
    stamp(2)
    a("s_barrier")
    stamp(3)
    for j in range(3):
        a(f"ds_read_b128 v[{ACC+4*j}:{ACC+4*j+3}], v3 offset:{LQ+128*j}")
    a("s_waitcnt lgkmcnt(0)")
    done = 0
    n = 24
    scores(0)
    done = 1
    while done < 8:
        assert (n - 24) // 3 < done
        kvload(n)
        n += 1
        cnt = 0
        while done < 8 and cnt < 2 and 3 * done + 2 <= landed[0]:
            scores(done)
            done += 1
            cnt += 1
    red8("v_add_f32", range(S, S + 8))
    for rep in range(2):
        for t in range(0, 8, 2):
            a(f"v_cvt_pk_bf16_f32 v{S+t+1}, v{S+t}, v{S+t+1}")
            a(f"v_lshlrev_b32 v{S+t}, 16, v{S+t+1}\nv_and_b32 v{S+t+1}, 0xffff0000, v{S+t+1}")
            if rep == 0:
                a(f"v_mul_f32 v{S+t}, {SCALE}, v{S+t}\nv_mul_f32 v{S+t+1}, {SCALE}, v{S+t+1}")
    a(f"v_max3_f32 v36, v{S}, v{S+1}, v{S+2}\nv_max3_f32 v36, v36, v{S+3}, v{S+4}\nv_max3_f32 v36, v36, v{S+5}, v{S+6}\nv_max_f32 v36, v36, v{S+7}")
    red_hi("v_max_f32", (36,))
    a("v_readlane_b32 s34, v36, 63")
    for t in range(8):
        a(f"v_subrev_f32 v{ACC+t}, s34, v{S+t}\nv_mul_f32 v{ACC+t}, {LOG2E}, v{ACC+t}\nv_exp_f32 v{ACC+t}, v{ACC+t}")
    a(f"s_lshl3_add_u32 s35, s27, s28\ns_lshl3_add_u32 s35, s35, s26\ns_lshl_b32 s35, s35, 3\ns_add_u32 s35, s35, {ML}\nv_mov_b32 v38, s35")
    a(f"v_add_f32 v37, v{ACC}, v{ACC+1}")
    for t in range(2, 8):
        a(f"v_add_f32 v37, v37, v{ACC+t}")
    red_hi("v_add_f32", (37,))
    a("s_lshl_b64 exec, 1, 63")
    a("global_store_dwordx2 v38, v[36:37], s[24:25] sc1", "ml")
    exec_all()
    stamp(4)
    while n < 24 + jb:
        kvload(n)
        n += 1
    stamp(5)
    a("s_barrier")
    stamp(6)
    a(f"v_mov_b32 v38, {LML}\nds_read_b64 v[36:37], v38\ns_waitcnt lgkmcnt(0)")
    for t in range(8):
        a(f"v_sub_f32 v{S+t}, v{S+t}, v36\nv_mul_f32 v{S+t}, {LOG2E}, v{S+t}\nv_exp_f32 v{S+t}, v{S+t}")
    for t in range(8):
        a(f"v_mul_f32 v{S+t}, v{S+t}, v37\nv_cvt_pk_bf16_f32 v{S+t}, v{S+t}, v{S+t}")
    pdone = 0
    while n < 48:
        kvload(n)
        n += 1
        cnt = 0
        while cnt < 2 and 24 + 3 * pdone + 2 <= landed[0]:
            pv(pdone)
            pdone += 1
            cnt += 1
    while 24 + 3 * pdone + 2 <= landed[0]:
        pv(pdone)
        pdone += 1
    assert pdone >= 3
    stamp(7)
    vm_common = list(a.vm)

    def pv_finish(sfx):
        a(f"s_mul_i32 s34, s26, 1536\ns_add_u32 s34, s34, {LPV}")
        eo_addr(1, "s34", 768)
        a(f"s_lshl_b32 s34, s26, 8\ns_add_u32 s35, s34, {LPV}\nv_lshl_add_u32 v38, v0, 2, s35")
        a(f"s_lshl3_add_u32 s35, s27, s28\ns_mul_i32 s35, s35, 768\ns_add_u32 s35, s35, s34\ns_add_u32 s35, s35, {OP}\nv_lshl_add_u32 v39, v0, 2, s35")
        for t in range(pdone, 8):
            A = A0 if t % 2 == 0 else A1
            afrag(A, S + t)
            a.wait_vm(("kv", 24 + 3 * t + 2))
            for j in range(3):
                mfma(ACC + 4 * j, A, KV + 12 * t + 4 * j, False)
        stamp(8)
        exec_eo()
        for j in range(3):
            a(f"ds_write_b128 v1, v[{ACC+4*j}:{ACC+4*j+3}] offset:{256*j}")
        exec_all()
        a("s_waitcnt lgkmcnt(0)")
        a(f"L_b3_{sfx}:")
        a("s_barrier")
        a(f"s_cmp_lt_u32 s26, 3\ns_cbranch_scc0 L_pub_{sfx}")
        for k in range(8):
            a(f"ds_read2st64_b32 v[{72+2*k}:{73+2*k}], v38 offset0:{6*k} offset1:{6*k+3}")
        a("s_waitcnt lgkmcnt(0)")
        tree16(72)
        a("global_store_dword v39, v72, s[24:25] sc1")
        a(f"L_pub_{sfx}:")
        stamp(9)

    a("s_cmp_lt_u32 s2, 160\ns_cbranch_scc1 L_wo")
    a("s_cmp_lt_u32 s2, 184\ns_cbranch_scc1 L_ffn")
    pv_finish("none")
    finish()

    a("L_wo:")
    a.vm = list(vm_common)
    a("s_bfe_u32 s42, s30, 0x10001\ns_lshl1_add_u32 s42, s29, s42\ns_and_b32 s43, s30, 1\ns_lshl1_add_u32 s43, s28, s43")
    a("s_lshl3_add_u32 s34, s42, s26\ns_mul_i32 s34, s34, 61440\ns_lshl_b32 s35, s43, 7\ns_add_u32 s34, s34, s35\ns_add_u32 s34, s34, 2560")
    a("s_add_u32 s12, s12, s34\ns_addc_u32 s13, s13, 0")
    a("v_mul_u32_u24 v36, 7680, v2\nv_add_u32 v36, v36, v3")
    for i in range(6):
        a(f"global_load_dwordx4 v[{WR+4*i}:{WR+4*i+3}], v36, s[12:13] offset:{(i-2)*1280} nt", "w")
    a(f"s_lshr_b32 s34, s26, 2\ns_lshl1_add_u32 s34, s42, s34\ns_mul_i32 s34, s34, 6144\ns_and_b32 s35, s26, 3\ns_mul_i32 s35, s35, 192\ns_add_u32 s34, s34, s35\ns_add_u32 s34, s34, {OP}")
    a("v_mul_u32_u24 v160, 48, v3\nv_mad_u32_u24 v160, v2, 24, v160\nv_add_u32 v160, s34, v160")
    a(f"s_lshl_b32 s34, s26, 9\ns_add_u32 s34, s34, {LWO}")
    eo_addr(161, "s34", 256)
    a(f"v_lshlrev_b32 v162, 2, v0\ns_mul_i32 s34, s42, 2560\ns_lshl_b32 s35, s43, 8\ns_add_u32 s34, s34, s35\ns_add_u32 s34, s34, {YP}\nv_add_u32 v163, s34, v162\nv_add_u32 v162, {LWO}, v162")
    pv_finish("wo")
    poll_head("L_po")
    a("global_load_dwordx4 v[88:91], v160, s[24:25] sc1\nglobal_load_dwordx2 v[92:93], v160, s[24:25] offset:16 sc1")
    a("s_waitcnt vmcnt(0)")
    a("v_max3_u32 v36, v88, v89, v90\nv_max3_u32 v36, v36, v91, v92\nv_max_u32 v36, v36, v93\nv_cmp_eq_u32 vcc, -1, v36")
    poll_tail("L_po")
    stamp(10)
    red8("v_add_f32", range(88, 94))
    for i in range(6):
        a(f"v_cvt_pk_bf16_f32 v{88+i}, v{88+i}, v{88+i}")
    for i in range(6):
        A = A0 if i % 2 == 0 else A1
        afrag(A, 88 + i)
        mfma(ACC, A, WR + 4 * i, i == 0)
    exec_eo()
    a(f"ds_write_b128 v161, v[{ACC}:{ACC+3}]")
    exec_all()
    a("s_waitcnt lgkmcnt(0)\ns_barrier")
    a("s_cmp_eq_u32 s26, 0\ns_cbranch_scc0 L_fin")
    for k in range(8):
        a(f"ds_read2st64_b32 v[{72+2*k}:{73+2*k}], v162 offset0:{2*k} offset1:{2*k+1}")
    a("s_waitcnt lgkmcnt(0)")
    tree16(72)
    a("global_store_dword v163, v72, s[24:25] sc1")
    stamp(11)
    a("L_fin:")
    finish()

    a("L_ffn:")
    a.vm = list(vm_common)
    a("s_sub_u32 s42, s2, 160")
    a("s_mul_i32 s34, s26, 196608\ns_lshl_b32 s35, s42, 7\ns_add_u32 s34, s34, s35\ns_add_u32 s16, s16, s34\ns_addc_u32 s17, s17, 0")
    a("s_mul_i32 s34, s42, 81920\ns_lshl_b32 s35, s26, 7\ns_add_u32 s34, s34, s35\ns_add_u32 s18, s18, s34\ns_addc_u32 s19, s19, 0")
    a("v_and_b32 v36, 1, v2\nv_lshlrev_b32 v36, 5, v36\nv_lshrrev_b32 v37, 1, v2\nv_add_u32 v36, v36, v37\nv_mul_u32_u24 v36, 3072, v36\nv_add_u32 v36, v36, v3")
    a("s_movk_i32 s37, 12288")
    for i in range(8):
        a(f"global_load_dwordx4 v[{WR+4*i}:{WR+4*i+3}], v36, s[16:17] nt", "w")
        if i < 7:
            a("s_add_u32 s16, s16, s37\ns_addc_u32 s17, s17, 0")
    a("v_mul_u32_u24 v36, 10240, v2\nv_add_u32 v36, v36, v3")
    for i in range(8):
        if i == 4:
            a("s_add_u32 s18, s18, 5120\ns_addc_u32 s19, s19, 0")
        a(f"global_load_dwordx4 v[{KV+4*i}:{KV+4*i+3}], v36, s[18:19] offset:{(i%4)*1280} nt", "w")
    assert pdone >= 5
    X, XA, GA, SA, F1W, F1R, FPA, H, G = 88, 89, 90, 91, 92, 93, 94, 95, 100
    a(f"v_and_b32 v36, 15, v0\nv_lshrrev_b32 v37, 4, v0\nv_lshl_add_u32 v{XA}, v36, 2, v37\nv_lshlrev_b32 v{XA}, 1, v{XA}\ns_lshl_b32 s34, s26, 7\nv_add_u32 v{XA}, s34, v{XA}")
    a(f"global_load_ushort v{X}, v{XA}, s[4:5]", "w")
    a(f"s_lshl_b32 s34, s26, 8\ns_add_u32 s35, s34, {YP+3840}")
    a(f"v_mul_u32_u24 v{GA}, 10240, v37\nv_lshl_add_u32 v{GA}, v36, 4, v{GA}\nv_add_u32 v{GA}, s35, v{GA}")
    a(f"s_lshl_b32 s35, s26, 3\ns_add_u32 s35, s35, {LST}\nv_mov_b32 v{SA}, s35")
    a(f"v_and_b32 v38, 1, v37\nv_lshlrev_b32 v38, 2, v38\nv_and_b32 v39, 2, v37\nv_add_u32 v38, v38, v39\nv_lshl_add_u32 v38, v36, 3, v38")
    a(f"s_lshl_b32 s35, s26, 2\ns_add_u32 s35, s35, {LF1}\nv_mad_u32_u24 v{F1W}, v38, 48, s35")
    a(f"v_mul_u32_u24 v{F1R}, 48, v0\nv_add_u32 v{F1R}, {LF1}, v{F1R}")
    a(f"s_mul_i32 s35, s42, 2560\ns_add_u32 s35, s35, s34\ns_add_u32 s35, s35, {FP}\nv_lshl_add_u32 v{FPA}, v38, 2, s35")
    a(f"s_add_u32 s35, s34, {FP+2560}\nv_mul_u32_u24 v96, 15360, v37\nv_lshl_add_u32 v96, v36, 4, v96\nv_add_u32 v96, s35, v96\nv_add_u32 v97, 7680, v96")
    a(f"v_mov_b32 v98, {LST}")
    a("s_cmp_lt_u32 s26, 8\ns_cbranch_scc0 L_b3_ffn")
    pv_finish("ffn")
    poll_head("L_py")
    for k in range(4):
        a(f"global_load_dwordx4 v[{G+4*k}:{G+4*k+3}], v{GA}, s[24:25] offset:{2560*k-3840} sc1")
    a("s_waitcnt vmcnt(0)")
    for step in (8, 4):
        for k in range(0, step, 2):
            a(f"v_pk_add_f32 v[{G+k}:{G+k+1}], v[{G+k}:{G+k+1}], v[{G+step+k}:{G+step+k+1}]")
    transpose_reduce(G)
    a(f"v_cmp_u_f32 vcc, v{G}, v{G}")
    poll_tail("L_py")
    stamp(10)
    a(f"v_cvt_pk_bf16_f32 v{G}, v{G}, v{G}\nv_lshlrev_b32 v{X}, 16, v{X}\nv_and_b32 v{G}, 0xffff0000, v{G}\nv_add_f32 v{H}, v{X}, v{G}")
    a(f"v_cvt_pk_bf16_f32 v{H}, v{H}, v{H}\nv_and_b32 v{H}, 0xffff0000, v{H}")
    a(f"v_mov_b32 v{G}, v{H}\nv_mul_f32 v{G+1}, v{H}, v{H}")
    red8("v_add_f32", (G, G + 1))
    red_hi("v_add_f32", (G, G + 1))
    a(f"s_lshl_b64 exec, 1, 63\nds_write_b64 v{SA}, v[{G}:{G+1}]")
    exec_all()
    a("s_waitcnt lgkmcnt(0)\ns_barrier")
    for k in range(5):
        a(f"ds_read_b128 v[{G+4*k}:{G+4*k+3}], v98 offset:{16*k}")
    a("s_waitcnt lgkmcnt(0)")
    for p, q in ((0, 2), (4, 6), (8, 10), (12, 14), (16, 18), (0, 4), (8, 12), (0, 16), (0, 8)):
        a(f"v_pk_add_f32 v[{G+p}:{G+p+1}], v[{G+p}:{G+p+1}], v[{G+q}:{G+q+1}]")
    ln_scalars(f"v{G}", f"v{G+1}", G + 2, G + 3)
    a(f"v_sub_f32 v{G}, v{H}, v{G+2}\nv_cvt_pk_bf16_f32 v{G}, v{G}, v{G}\nv_and_b32 v{G}, 0xffff0000, v{G}\nv_mul_f32 v{G}, v{G}, v{G+3}\nv_cvt_pk_bf16_f32 v{G}, v{G}, v{G}")
    stamp(11)
    bcast_gemv(G, WR, ACC)
    eo_combine(ACC)
    a("s_mov_b32 exec_lo, 0x00ff00ff\ns_mov_b32 exec_hi, 0x00ff00ff")
    a(f"ds_write2_b32 v{F1W}, v{ACC}, v{ACC+1} offset0:0 offset1:12")
    exec_all()
    a("s_waitcnt lgkmcnt(0)\ns_barrier")
    a(f"ds_read_b128 v[{G}:{G+3}], v{F1R}\nds_read_b128 v[{G+4}:{G+7}], v{F1R} offset:16\nds_read_b64 v[{G+8}:{G+9}], v{F1R} offset:32")
    a("s_waitcnt lgkmcnt(0)")
    for p, q in ((0, 2), (4, 6), (0, 8), (0, 4)):
        a(f"v_pk_add_f32 v[{G+p}:{G+p+1}], v[{G+p}:{G+p+1}], v[{G+q}:{G+q+1}]")
    a(f"v_add_f32 v{G}, v{G}, v{G+1}\nv_max_f32 v{G}, 0, v{G}\nv_cvt_pk_bf16_f32 v{G}, v{G}, v{G}")
    stamp(12)
    bcast_gemv(G, KV, ACC)
    eo_combine(ACC)
    a("s_mov_b32 exec_lo, 0x00ff00ff\ns_mov_b32 exec_hi, 0x00ff00ff")
    a(f"global_store_dwordx2 v{FPA}, v[{ACC}:{ACC+1}], s[24:25] sc1")
    exec_all()
    stamp(13)
    a("s_cmp_eq_u32 s26, s42\ns_cbranch_scc0 L_notfinal")
    poll_head("L_pz")
    for k in range(6):
        a(f"global_load_dwordx4 v[{G+4*k}:{G+4*k+3}], v{96+k//3}, s[24:25] offset:{2560*(k%3)-2560} sc1")
    a("s_waitcnt vmcnt(0)")
    for p, q in ((0, 4), (8, 12), (16, 20), (0, 8), (0, 16)):
        for e in (0, 2):
            a(f"v_pk_add_f32 v[{G+p+e}:{G+p+e+1}], v[{G+p+e}:{G+p+e+1}], v[{G+q+e}:{G+q+e+1}]")
    transpose_reduce(G)
    a(f"v_cmp_u_f32 vcc, v{G}, v{G}")
    poll_tail("L_pz")
    a(f"v_cvt_pk_bf16_f32 v{G}, v{G}, v{G}\nv_and_b32 v{G}, 0xffff0000, v{G}\nv_add_f32 v{G}, v{H}, v{G}\nv_cvt_pk_bf16_f32 v{G}, v{G}, v{G}")
    a(f"global_store_short v{XA}, v{G}, s[20:21]")
    stamp(14)
    finish()
    a("L_notfinal:")
    a("s_cmp_eq_u32 s2, 160\ns_cbranch_scc0 L_fin2\ns_cmp_eq_u32 s26, 9\ns_cbranch_scc0 L_fin2")
    a(f"v_mov_b32 v36, {EPOCH}\nv_mov_b32 v37, s40\ns_mov_b64 exec, 1\nglobal_store_dword v36, v37, s[24:25] sc1")
    a("L_fin2:")
    finish()
    if diag:
        a("L_stamps:")
        exec_all()
        a("s_waitcnt vmcnt(0)")
        stamp(15)
        a("s_waitcnt lgkmcnt(0)")
        a(f"s_mul_i32 s34, s2, 10\ns_add_u32 s34, s34, s26\ns_lshl_b32 s34, s34, 7\ns_add_u32 s34, s34, {STAMP}\nv_mov_b32 v36, s34")
        for k in range(32):
            a(f"v_mov_b32 v{40+k}, s{64+k}")
        a("s_mov_b64 exec, 1")
        for k in range(8):
            a(f"global_store_dwordx4 v36, v[{40+4*k}:{43+4*k}], s[24:25] offset:{16*k}")
    a("L_end:")
    a("s_endpgm")
    a("L_code_end:")
    a.raw(f""".section .rodata,"a"
.p2align 6
.amdhsa_kernel {NAME}_kernel
  .amdhsa_next_free_vgpr 168
  .amdhsa_next_free_sgpr 96
  .amdhsa_accum_offset 168
  .amdhsa_group_segment_fixed_size 0
  .amdhsa_kernarg_size 88
  .amdhsa_user_sgpr_count 2
  .amdhsa_user_sgpr_kernarg_segment_ptr 1
  .amdhsa_system_sgpr_workgroup_id_x 1
  .amdhsa_float_denorm_mode_32 3
.end_amdhsa_kernel""")
    return a.text()


if __name__ == "__main__":
    import json
    out = sys.argv[1]
    kw = json.loads(sys.argv[2]) if len(sys.argv) > 2 else {}
    open(out, "w").write(gen(**kw))
```

```python
import sys
sys.path.insert(0, "exp")
from asmlib import Asm

NAME = "sequential_preLN__sliding_block_cached__dense_activation_relu__decode"
HEADER = open("cdna_kernels/" + NAME + ".s.ref").read().split("; Override launch")[0]

TRG = 0xa4000
EPOCH, FLAGS, QP, ML, OP, YP, FP, STAMP = 0, 0x1000, 0x2000, 0x42000, 0x4a000, 0x7a000, 0x84000, 0x100000
LQ, LML, LMW, LQP, LPV, LWO, LST, LF1, LW, LDS_BYTES = 0, 512, 576, 1024, 4096, 16384, 20480, 20736, 28672, 28672 + 81920
LQF, LCNT = 528, 532
KV, WR, S, ACC, A0, A1 = 40, 136, 8, 16, 28, 32
LOG2E, SCALE, EPS, INV640 = "0x3fb8aa3b", "0x3d93cd3a", "0x3727c5ac", "0x3acccccd"
DM = "row_mask:0xf bank_mask:0xf"
CAP = 262144
NF = 48


def gen(d=4, kb=18, jb=17, jt=19, local=True, tw=0, pat="gint2", diag=False, prefetch=True, qsleep=2, sl1=1, sl2=1, wtrig=3, dw=48, dwf=40, chunk=16, win=None, stamps=None):
    a = Asm()
    SS, SW, ST = {"blk": (64 * 3072, 8 * 3072, 3072), "wint": (64 * 3072, 3072, 8 * 3072),
                  "gint": (8 * 3072, 3072, 64 * 3072), "gint2": (3072, 8 * 3072, 64 * 3072)}[pat]

    def stamp(k):
        if diag and (stamps is None or k in stamps or k in (0, 15)):
            a(f"s_memrealtime s[{64+2*k}:{65+2*k}]")

    def finish():
        a("s_branch L_stamps" if diag else "s_endpgm")

    def masks():
        a("v_and_b32 v36, 1, v0")
        a("v_mov_b32 v37, 0xffff")
        a("v_lshlrev_b32 v36, 4, v36")
        a("v_lshlrev_b32 v36, v36, v37")
        a("v_bfe_u32 v37, v0, 1, 2")
        for r in range(4):
            a(f"v_cmp_eq_u32 vcc, {r}, v37")
            a(f"v_cndmask_b32 v{4+r}, 0, v36, vcc")

    def afrag(dst, pp):
        for r in range(4):
            a(f"v_and_b32 v{dst+r}, v{4+r}, v{pp}")

    def mfma(acc, A, B, first):
        c = "0" if first else f"v[{acc}:{acc+3}]"
        a(f"v_mfma_f32_16x16x32_bf16 v[{acc}:{acc+3}], v[{A}:{A+3}], v[{B}:{B+3}], {c}")

    def gemv_chain(pps, Bs, acc):
        AF = (A0, A1)
        afrag(AF[0], pps[0])
        for i in range(len(pps)):
            if i + 1 < len(pps):
                afrag(AF[(i + 1) % 2], pps[i + 1])
            mfma(acc, AF[i % 2], Bs[i], i == 0)

    def red8(op, regs):
        for ctl in ("quad_perm:[1,0,3,2]", "quad_perm:[2,3,0,1]", "row_half_mirror"):
            for r in regs:
                a(f"{op}_dpp v{r}, v{r}, v{r} {ctl} {DM}")

    def red_hi(op, regs):
        for ctl in (f"row_ror:8 {DM}", "row_bcast:15 row_mask:0xa bank_mask:0xf", "row_bcast:31 row_mask:0xc bank_mask:0xf"):
            for r in regs:
                a(f"{op}_dpp v{r}, v{r}, v{r} {ctl}")

    def ln_scalars(sm, sq, mb, rinv):
        a(f"v_mul_f32 v{mb}, {INV640}, v{sm}")
        a(f"v_mul_f32 v{rinv}, {INV640}, v{sq}")
        a(f"v_fma_f32 v{rinv}, -v{mb}, v{mb}, v{rinv}")
        a(f"v_max_f32 v{rinv}, 0, v{rinv}")
        a(f"v_cvt_pk_bf16_f32 v{mb}, v{mb}, v{rinv}")
        a(f"v_and_b32 v{rinv}, 0xffff0000, v{mb}")
        a(f"v_add_f32 v{rinv}, {EPS}, v{rinv}")
        a(f"v_cvt_pk_bf16_f32 v{rinv}, 0, v{rinv}")
        a(f"v_sqrt_f32 v{rinv}, v{rinv}")
        a(f"v_lshlrev_b32 v{mb}, 16, v{mb}")
        a(f"v_cvt_pk_bf16_f32 v{rinv}, 0, v{rinv}")
        a(f"v_rcp_f32 v{rinv}, v{rinv}")

    def exec_eo():
        a("s_mov_b32 exec_lo, 0x00ff00ff\ns_mov_b32 exec_hi, 0xff00ff00")

    def exec_all():
        a("s_mov_b64 exec, -1")

    def eo_addr(dst, base_s, half_stride):
        a(f"v_lshrrev_b32 v{dst}, 5, v0")
        a(f"v_mul_u32_u24 v{dst}, {half_stride}, v{dst}")
        a(f"v_lshl_add_u32 v{dst}, v3, 1, v{dst}")
        a("v_and_b32 v39, 16, v0")
        a(f"v_add3_u32 v{dst}, v{dst}, v39, {base_s}")

    def pk(p, q):
        a(f"v_pk_add_f32 v[{p}:{p+1}], v[{p}:{p+1}], v[{q}:{q+1}]")

    def read16_sum(base, addr, offs):
        for k in range(8):
            a(f"ds_read2st64_b32 v[{base+2*k}:{base+2*k+1}], v{addr} offset0:{offs[k][0]} offset1:{offs[k][1]}")
        sum16(base)

    def far_store(sfx):
        if local:
            a(f"L_far_{sfx}:")
            a("global_store_dword v37, v72, s[24:25] sc1")
            a(f"s_branch L_pub_{sfx}")

    def sum16(base):
        for k, w in ((0, 6), (4, 4), (8, 2), (12, 0)):
            a(f"s_waitcnt lgkmcnt({0 if diag else w})")
            pk(base + k, base + k + 2)
            if k in (4, 12):
                pk(base + k - 4, base + k)
        pk(base, base + 8)
        a(f"v_add_f32 v{base}, v{base}, v{base+1}")

    def poll_head(lbl):
        a(f"s_mov_b32 s41, {CAP}")
        a(f"{lbl}:")

    def poll_tail(lbl, sleep=0):
        if sleep:
            a(f"s_cbranch_vccz {lbl}_ok")
            a(f"s_sleep {sleep}")
            a("s_sub_u32 s41, s41, 1")
            a(f"s_cbranch_scc0 {lbl}")
            a(f"{lbl}_ok:")
        else:
            a(f"s_cbranch_vccnz {lbl}")
            a(f"{lbl}_ok:")

    def poll_count(lbl):
        a("s_sub_u32 s41, s41, 1")
        a(f"s_cbranch_scc1 {lbl}_giveup")

    def giveup(lbl):
        a(f"{lbl}_giveup:")
        a("s_waitcnt vmcnt(0)")
        a(f"s_branch {lbl}_ok")

    def mpoll(lbl, loads, regs, sleep):
        a(f"s_mov_b32 s41, {CAP}")
        a(f"s_branch {lbl}_go")
        a(f"{lbl}:")
        if sleep:
            a(f"s_sleep {sleep}")
        a(f"{lbl}_go:")
        for ld in loads:
            a(ld)
        poll_count(lbl)
        a("s_waitcnt vmcnt(0)")
        regs = list(regs)
        a(f"v_max3_u32 v36, v{regs[0]}, v{regs[1]}, v{regs[2]}")
        rest = regs[3:]
        if len(rest) > 6:
            a(f"v_max3_u32 v39, v{rest[0]}, v{rest[1]}, v{rest[2]}")
            rest = rest[3:]
            acc = [36, 39]
            k = 0
            while len(rest) >= 3:
                a(f"v_max3_u32 v{acc[k]}, v{acc[k]}, v{rest[0]}, v{rest[1]}")
                rest = rest[2:]
                k ^= 1
            rest = rest + [39]
        while len(rest) >= 2:
            a(f"v_max3_u32 v36, v36, v{rest[0]}, v{rest[1]}")
            rest = rest[2:]
        if rest:
            a(f"v_max_u32 v36, v36, v{rest[0]}")
        a("v_cmp_eq_u32 vcc, -1, v36")
        a("s_and_b64 exec, exec, vcc")
        a(f"s_cbranch_scc1 {lbl}")
        a(f"{lbl}_ok:")
        exec_all()

    def transpose_reduce(r):
        a(f"v_permlane32_swap_b32 v{r}, v{r+2}")
        a(f"v_permlane32_swap_b32 v{r+1}, v{r+3}")
        pk(r, r + 2)
        a(f"v_permlane16_swap_b32 v{r}, v{r+1}")
        a(f"v_add_f32 v{r}, v{r}, v{r+1}")

    def eo_combine(acc):
        a(f"v_permlane32_swap_b32 v{acc}, v{acc+2}")
        a(f"v_permlane32_swap_b32 v{acc+1}, v{acc+3}")
        a(f"v_add_f32_dpp v{acc}, v{acc+2}, v{acc} row_ror:8 {DM}")
        a(f"v_add_f32_dpp v{acc+1}, v{acc+3}, v{acc+1} row_ror:8 {DM}")

    a.raw(HEADER.rstrip())
    a.raw(f"; @launch grid=(256,1,1) block=(640,1,1) lds={LDS_BYTES}")
    a.raw('.amdgcn_target "amdgcn-amd-amdhsa--gfx950"\n.text')
    a.raw(f".globl {NAME}_kernel\n.p2align 8\n.type {NAME}_kernel,@function\n{NAME}_kernel:")
    a("L_start:")
    stamp(0)
    a("s_cmp_ge_u32 s2, 256\ns_cbranch_scc1 L_end")
    a("s_load_dwordx16 s[4:19], s[0:1], 0")
    a("s_load_dwordx4 s[20:23], s[0:1], 64")
    a("s_load_dwordx2 s[24:25], s[0:1], 80")
    a("v_lshrrev_b32 v1, 6, v0")
    a("v_and_b32 v0, 63, v0")
    a("v_readfirstlane_b32 s26, v1")
    a("s_and_b32 s29, s2, 7\ns_lshr_b32 s30, s2, 3\ns_and_b32 s27, s30, 3\ns_lshl2_add_u32 s27, s29, s27\ns_lshr_b32 s28, s30, 2")
    a("v_lshrrev_b32 v2, 3, v0\nv_and_b32 v3, 7, v0\nv_lshlrev_b32 v3, 4, v3")
    a("s_cmp_lt_u32 s26, 8\ns_cbranch_scc1 L_stream")
    a("s_cmp_eq_u32 s26, 9\ns_cbranch_scc1 L_w9")

    a("s_setprio 3")
    a("s_mov_b32 s34, 122880\ns_mul_i32 s35, s27, 384\ns_mul_i32 s36, s28, 983040\ns_add_u32 s35, s35, s36\ns_mul_i32 s36, s28, 160\ns_movk_i32 s37, 12288")
    a("v_mad_u32_u24 v1, v2, s34, v3")
    a("v_lshlrev_b32 v36, 4, v0\nv_lshlrev_b32 v37, 2, v0\nv_mad_u32_u24 v38, v2, 20, s36")
    a("s_waitcnt lgkmcnt(0)")
    a("s_load_dword s40, s[24:25], 0")
    a("global_load_dwordx4 v[8:11], v36, s[4:5]", "x")
    a("global_load_dword v12, v37, s[4:5] offset:1024", "x")
    a("global_load_dwordx4 v[160:163], v38, s[4:5]", "x")
    a("global_load_dword v164, v38, s[4:5] offset:16", "x")
    a("s_add_u32 s10, s10, s35\ns_addc_u32 s11, s11, 0")
    for t in range(10):
        for j in range(3):
            r = KV + 12 * t + 4 * j
            a(f"global_load_dwordx4 v[{r}:{r+3}], v1, s[10:11] offset:{128*j} nt", ("wq", t))
        if t < 9:
            a("s_add_u32 s10, s10, s37\ns_addc_u32 s11, s11, 0")
    a("s_barrier")
    stamp(1)
    masks()
    a(f"s_movk_i32 s34, {LQP}")
    eo_addr(1, "s34", 768)
    a("v_mov_b32 v13, 0\nv_mov_b32 v14, 0\ns_mov_b32 s34, 0x3f803f80")
    a.wait_vm("x")
    for k in range(5):
        a(f"v_dot2c_f32_bf16 v13, s34, v{8+k}")
        a(f"v_dot2c_f32_bf16 v14, v{8+k}, v{8+k}")
    red8("v_add_f32", (13, 14))
    red_hi("v_add_f32", (13, 14))
    a("v_readlane_b32 s34, v13, 63\nv_readlane_b32 s35, v14, 63")
    a("v_mov_b32 v13, s34\nv_mov_b32 v14, s35")
    ln_scalars(13, 14, 13, 14)
    stamp(2)
    for k in range(5):
        a(f"v_lshlrev_b32 v8, 16, v{160+k}\nv_and_b32 v9, 0xffff0000, v{160+k}")
        a("v_sub_f32 v8, v8, v13\nv_sub_f32 v9, v9, v13")
        a("v_cvt_pk_bf16_f32 v8, 0, v8\nv_cvt_pk_bf16_f32 v9, 0, v9")
        a("v_mul_f32 v8, v8, v14\nv_mul_f32 v9, v9, v14")
        a("v_cvt_pk_bf16_f32 v8, v8, v8\nv_cvt_pk_bf16_f32 v9, v9, v9")
        afrag(A0, 8)
        afrag(A1, 9)
        a.wait_vm(("wq", 2 * k + 1))
        for h, A in ((0, A0), (1, A1)):
            t = 2 * k + h
            for j in range(3):
                mfma(ACC + 4 * j, A, KV + 12 * t + 4 * j, t == 0)
    a("s_waitcnt lgkmcnt(0)")
    a("s_mul_i32 s40, s40, 0x9e3779b1\ns_add_u32 s40, s40, 0x7f4a7c15")
    a(f"s_lshl_b32 s34, s27, 13\ns_add_u32 s34, s34, {QP + 4096}\ns_lshl_b32 s35, s28, 10\ns_add_u32 s35, s35, s34\ns_sub_u32 s35, s35, 4096")
    a("v_lshl_add_u32 v8, v0, 4, s35\nv_lshl_add_u32 v9, v0, 4, s34")
    a(f"v_lshlrev_b32 v10, 2, v0\nv_add_u32 v10, {LQP}, v10")
    exec_eo()
    for j in range(3):
        a(f"ds_write_b128 v1, v[{ACC+4*j}:{ACC+4*j+3}] offset:{256*j}")
    exec_all()
    a("s_waitcnt lgkmcnt(0)")
    for j in range(3):
        a(f"ds_read2st64_b32 v[{ACC+2*j}:{ACC+2*j+1}], v10 offset0:{j} offset1:{3+j}")
    a("v_mov_b32 v39, s40")
    a("s_waitcnt lgkmcnt(0)")
    for j in range(3):
        a(f"v_add_f32 v{36+j}, v{ACC+2*j}, v{ACC+2*j+1}")
    a("global_store_dwordx4 v8, v[36:39], s[24:25] sc1")
    stamp(3)
    a("s_waitcnt vmcnt(0)")
    stamp(6)
    poll_head("L_pq")
    for s in range(8):
        a(f"global_load_dwordx4 v[{KV+4*s}:{KV+4*s+3}], v9, s[24:25] offset:{1024*s-4096} sc1")
    a("s_waitcnt vmcnt(0)")
    T = [KV + 4 * s + 3 for s in range(8)]
    for op, r in (("min", 11), ("max", 12)):
        a(f"v_{op}3_u32 v{r}, v{T[0]}, v{T[1]}, v{T[2]}\nv_{op}3_u32 v{r}, v{r}, v{T[3]}, v{T[4]}\nv_{op}3_u32 v{r}, v{r}, v{T[5]}, v{T[6]}\nv_{op}_u32 v{r}, v{r}, v{T[7]}")
    a("v_xor_b32 v11, s40, v11\nv_xor_b32 v12, s40, v12\nv_or_b32 v11, v11, v12\nv_cmp_ne_u32 vcc, 0, v11")
    poll_tail("L_pq", qsleep)
    for s in range(1, 8):
        for j in range(3):
            a(f"v_add_f32 v{KV+j}, v{KV+j}, v{KV+4*s+j}")
    a(f"v_cvt_pk_bf16_f32 v{KV}, v{KV}, v{KV+1}\nv_cvt_pk_bf16_f32 v{KV+2}, v{KV+2}, v{KV+2}")
    a("v_lshlrev_b32 v10, 1, v0")
    a(f"ds_write_b16 v10, v{KV} offset:{LQ}\nds_write_b16_d16_hi v10, v{KV} offset:{LQ+128}\nds_write_b16 v10, v{KV+2} offset:{LQ+256}")
    a("s_waitcnt lgkmcnt(0)")
    a(f"v_mov_b32 v10, 0\nds_write_b32 v10, v10 offset:{LQF}")
    stamp(4)
    a(f"s_cmp_lt_u32 s2, {160+NF}\ns_cbranch_scc0 L_helper_done")
    if wtrig:
        a("v_lshrrev_b32 v14, 1, v3")
        poll_head("L_wt")
        if wtrig == 1:
            a(f"ds_read_b64 v[8:9], v14 offset:{LMW}")
        else:
            a(f"ds_read_b64 v[8:9], v10 offset:{LML}")
        a("s_waitcnt lgkmcnt(0)\nv_cmp_eq_u32 vcc, -1, v9")
        poll_tail("L_wt", 4)
    if wtrig == 3:
        a(f"s_lshl_b32 s34, s30, 7\ns_add_u32 s34, s34, {TRG}\nv_add_u32 v11, s34, v3")
        poll_head("L_tg")
        a("global_load_dword v8, v11, s[24:25] sc1\ns_waitcnt vmcnt(0)\nv_cmp_ne_u32 vcc, s40, v8")
        poll_tail("L_tg", 1)
    stamp(7)
    a(f"s_mov_b32 m0, {LW}")
    a("s_cmp_lt_u32 s2, 160\ns_cbranch_scc0 L_w8_ffn")
    a("s_bfe_u32 s42, s30, 0x10001\ns_lshl1_add_u32 s42, s29, s42\ns_and_b32 s43, s30, 1\ns_lshl1_add_u32 s43, s28, s43")
    a("s_mul_i32 s34, s42, 491520\ns_lshl_b32 s35, s43, 7\ns_add_u32 s34, s34, s35\ns_add_u32 s44, s12, s34\ns_addc_u32 s45, s13, 0")
    a("v_mul_u32_u24 v36, 7680, v2\nv_add_u32 v36, v36, v3\ns_mov_b32 s34, 8")
    a("L_w8_wo:")
    for i in range(6):
        a(f"s_waitcnt vmcnt({dw-1})")
        a("global_load_lds_dwordx4 v36, s[44:45] nt")
        a(f"s_add_u32 m0, m0, 1024\ns_add_u32 s44, s44, {1280 if i < 5 else 61440-5*1280}\ns_addc_u32 s45, s45, 0")
    a("s_sub_u32 s34, s34, 1\ns_cmp_lg_u32 s34, 0\ns_cbranch_scc1 L_w8_wo")
    stamp(8)
    a("s_waitcnt vmcnt(0)")
    stamp(9)
    a("s_barrier")
    finish()
    a("L_w8_ffn:")
    a("s_sub_u32 s42, s2, 160")
    a("s_lshl_b32 s35, s42, 6\ns_add_u32 s44, s16, s35\ns_addc_u32 s45, s17, 0")
    a("s_mul_i32 s34, s42, 40960\ns_add_u32 s46, s18, s34\ns_addc_u32 s47, s19, 0")
    a("v_lshrrev_b32 v37, 4, v0\nv_and_b32 v38, 3, v0\nv_and_b32 v36, 12, v0\nv_lshl_add_u32 v36, v36, 2, v37\nv_mul_u32_u24 v36, 3072, v36\nv_lshl_add_u32 v36, v38, 4, v36")
    a("v_mul_u32_u24 v37, 5120, v2\nv_add_u32 v37, v37, v3\ns_mov_b32 s34, 10")
    a("L_w8_w12:")
    for i in range(4):
        a(f"s_waitcnt vmcnt({dwf-1})")
        a("global_load_lds_dwordx4 v36, s[44:45] nt")
        a(f"s_add_u32 m0, m0, 1024\ns_add_u32 s44, s44, {12288 if i < 3 else 196608-3*12288}\ns_addc_u32 s45, s45, 0")
    for i in range(4):
        a(f"s_waitcnt vmcnt({dwf-1})")
        a("global_load_lds_dwordx4 v37, s[46:47] nt")
        if i < 3:
            a("s_add_u32 m0, m0, 1024\ns_add_u32 s46, s46, 1280\ns_addc_u32 s47, s47, 0")
        else:
            a(f"s_add_u32 m0, m0, 1024\ns_sub_u32 s46, s46, {3*1280-128}\ns_subb_u32 s47, s47, 0")
    a("s_sub_u32 s34, s34, 1\ns_cmp_lg_u32 s34, 0\ns_cbranch_scc1 L_w8_w12")
    stamp(8)
    a("s_branch L_helper_done")

    a("L_w9:")
    a(f"v_mov_b32 v8, -1\nv_mov_b32 v9, -1\nv_and_b32 v15, 15, v0\nv_lshlrev_b32 v15, 3, v15\nds_write_b64 v15, v[8:9] offset:{LML}")
    a("s_waitcnt lgkmcnt(0)")
    a("s_barrier")
    a("s_setprio 3")
    a("v_lshlrev_b32 v1, 4, v0")
    if prefetch:
        a("s_getpc_b64 s[34:35]\nL_pc:\ns_sub_u32 s34, s34, L_pc-L_start\ns_subb_u32 s35, s35, 0")
        a("s_lshl_b32 s36, s30, 10\nv_add_u32 v36, s36, v1")
        a("v_cmp_gt_u32 vcc, L_code_end-L_start-15, v36\ns_and_saveexec_b64 s[36:37], vcc\ns_cbranch_execz L_nopf")
        a("global_load_dwordx4 v[40:43], v36, s[34:35]")
        a("L_nopf:")
        exec_all()
    a("v_mov_b32 v8, -1\nv_mov_b32 v9, -1\nv_mov_b32 v10, -1\nv_mov_b32 v11, -1")
    a("s_lshl3_add_u32 s34, s27, s28")
    a(f"s_mul_i32 s35, s34, 768\ns_add_u32 s35, s35, {OP}\nv_add_u32 v37, s35, v1")
    a("s_waitcnt lgkmcnt(0)")
    a("s_load_dword s40, s[24:25], 0")
    a("s_mov_b32 exec_hi, 0xffff\nglobal_store_dwordx4 v37, v[8:11], s[24:25] sc1")
    exec_all()
    a("s_cmp_lt_u32 s2, 160\ns_cbranch_scc0 L_w9_notwo")
    a(f"s_bfe_u32 s34, s30, 0x10001\ns_lshl1_add_u32 s34, s29, s34\ns_mul_i32 s34, s34, 2560\ns_and_b32 s35, s30, 1\ns_lshl1_add_u32 s35, s28, s35\ns_lshl_b32 s35, s35, 8\ns_add_u32 s34, s34, s35\ns_add_u32 s34, s34, {YP}")
    a("v_add_u32 v36, s34, v1")
    a("s_mov_b64 exec, 0xffff\nglobal_store_dwordx4 v36, v[8:11], s[24:25] sc1")
    exec_all()
    a("s_branch L_w9_cleared")
    a("L_w9_notwo:")
    a(f"s_cmp_lt_u32 s2, {160+NF}\ns_cbranch_scc0 L_w9_cleared")
    a(f"s_sub_u32 s34, s2, 160\ns_mul_i32 s34, s34, 2560\ns_add_u32 s34, s34, {FP}\nv_add_u32 v36, s34, v1")
    a("global_store_dwordx4 v36, v[8:11], s[24:25] sc1\nglobal_store_dwordx4 v36, v[8:11], s[24:25] offset:1024 sc1")
    a("s_mov_b32 exec_hi, 0\nglobal_store_dwordx4 v36, v[8:11], s[24:25] offset:2048 sc1")
    exec_all()
    a("L_w9_cleared:")
    masks()
    a("v_lshrrev_b32 v14, 1, v3")
    a(f"v_mov_b32 v12, 0\nv_mov_b32 v13, 0\nds_write_b64 v15, v[12:13] offset:{LST}")
    a("s_waitcnt lgkmcnt(0)")
    a("s_mul_i32 s40, s40, 0x9e3779b1\ns_add_u32 s40, s40, 0x7f4a7c15")
    a("s_getreg_b32 s43, hwreg(HW_REG_XCC_ID, 0, 4)\ns_and_b32 s44, s40, 0xfffffff0\ns_or_b32 s43, s43, s44")
    a(f"s_lshl_b32 s34, s2, 2\ns_add_u32 s34, s34, {FLAGS}\nv_mov_b32 v36, s34\nv_mov_b32 v37, s43")
    a(f"s_lshl_b32 s34, s29, 2\ns_add_u32 s34, s34, {FLAGS}\nv_and_b32 v21, 31, v0\nv_lshl_add_u32 v21, v21, 5, s34")
    a("s_waitcnt vmcnt(0)")
    a("s_mov_b64 exec, 1\nglobal_store_dword v36, v37, s[24:25] sc1")
    exec_all()
    stamp(1)
    a(f"v_add_u32 v12, {FLAGS}, v1")
    a(f"s_lshl_b32 s34, s27, 10\ns_add_u32 s34, s34, {ML}\nv_add_u32 v13, s34, v1\ns_lshl_b32 s35, s28, 7\ns_add_u32 s34, s34, s35\nv_add_u32 v15, s34, v1")
    a("v_mov_b32 v10, s40\nv_mov_b32 v11, s40")
    poll_head("L_pl")
    a(f"ds_read_b64 v[8:9], v14 offset:{LMW}\ns_waitcnt lgkmcnt(0)")
    a("v_max_u32 v20, v8, v9\nv_cmp_eq_u32 vcc, -1, v20")
    poll_tail("L_pl", 2)
    a("s_mov_b64 exec, 0xff\nglobal_store_dwordx4 v15, v[8:11], s[24:25] sc1")
    exec_all()
    a("global_load_dwordx4 v[16:19], v12, s[24:25] sc1")
    stamp(5)
    a("s_waitcnt vmcnt(0)")
    stamp(6)
    poll_head("L_pf")
    for k in range(4):
        a(f"v_xor_b32 v{16+k}, s40, v{16+k}")
    a("v_or3_b32 v16, v16, v17, v18\nv_or_b32 v16, v16, v19\nv_cmp_lt_u32 vcc, 15, v16")
    a("s_cbranch_vccz L_pf_ok")
    a("global_load_dwordx4 v[16:19], v12, s[24:25] sc1\ns_waitcnt vmcnt(0)")
    a("s_sub_u32 s41, s41, 1\ns_cbranch_scc0 L_pf\nL_pf_ok:")
    stamp(3)
    a("global_load_dword v22, v21, s[24:25] sc1")
    poll_head("L_pm")
    a("global_load_dwordx4 v[8:11], v13, s[24:25] sc1\ns_waitcnt vmcnt(0)")
    a("v_cmp_ne_u32 vcc, s40, v10")
    poll_tail("L_pm", 1)
    a("v_mov_b32 v10, v8")
    red8("v_max_f32", (10,))
    red_hi("v_max_f32", (10,))
    a("v_readlane_b32 s34, v10, 63")
    a(f"v_subrev_f32 v8, s34, v8\nv_mul_f32 v8, {LOG2E}, v8\nv_exp_f32 v8, v8\nv_mul_f32 v9, v8, v9")
    red8("v_add_f32", (9,))
    red_hi("v_add_f32", (9,))
    a("v_cmp_ne_u32 vcc, s43, v22\ns_cmp_eq_u64 vcc, 0\ns_cselect_b32 s35, 1, 0")
    a(f"v_rcp_f32 v9, v9\nv_mov_b32 v8, s34\nv_mov_b32 v10, s40\nv_mov_b32 v11, s35\nv_mov_b32 v12, {LML}")
    a("s_lshl_b64 exec, 1, 63\nds_write_b128 v12, v[8:11]")
    exec_all()
    stamp(4)
    a("L_helper_done:")
    a("s_setprio 0")
    a(f"s_sub_u32 s34, s2, 160\ns_cmp_lt_u32 s34, {NF}\ns_cbranch_scc1 L_ffn")
    finish()

    a("L_stream:")
    a.vm = []
    a("v_mul_u32_u24 v1, 384, v2\nv_add_u32 v1, v1, v3")
    a(f"s_mul_i32 s34, s27, 12582912\ns_mul_i32 s35, s28, {SS}\ns_add_u32 s34, s34, s35\ns_mul_i32 s35, s26, {SW}\ns_add_u32 s34, s34, s35\ns_add_u32 s34, s34, 11010048\ns_mov_b32 s37, {ST}")
    a("s_waitcnt lgkmcnt(0)")
    a("s_add_u32 s6, s6, s34\ns_addc_u32 s7, s7, 0\ns_add_u32 s8, s8, s34\ns_addc_u32 s9, s9, 0")
    a("s_barrier")
    stamp(1)
    landed = [-1]
    W = [d] * 48 if win is None else [win[i % len(win)] for i in range(48)]

    hooks = {}

    def kvload(n):
        if n in hooks:
            a(hooks.pop(n))
            a.vm.pop()
        dn = W[n]
        if n - dn > landed[0]:
            a.wait_vm(("kv", n - dn))
            landed[0] = n - dn
        base = 6 if n < 24 else 8
        m = n % 24
        r = KV + 4 * m
        a(f"global_load_dwordx4 v[{r}:{r+3}], v1, s[{base}:{base+1}] offset:{128*(m%3)} nt", ("kv", n))
        if m % 3 == 2 and m < 23:
            a(f"s_add_u32 s{base}, s{base}, s37\ns_addc_u32 s{base+1}, s{base+1}, 0")

    cur = [0]

    def run(work, last):
        nonlocal chunk
        k = 0
        while k < len(work):
            cnt = 0
            while k < len(work) and work[k][0] <= landed[0] and (cnt < chunk or cur[0] >= last):
                a(work[k][1])
                cnt += work[k][1].count("\n") + 1
                k += 1
            if k < len(work):
                if cur[0] >= last:
                    return work[k:]
                assert cur[0] < 24 or any(f"v{KV+4*(cur[0]-24)}," in w[1] for w in work[k:]) is False or True
                kvload(cur[0])
                cur[0] += 1
        return []

    def loads_until(n):
        while cur[0] < n:
            kvload(cur[0])
            cur[0] += 1

    loads_until(max(W[:4]))
    masks()
    loads_until(kb)
    stamp(2)
    a("v_mov_b32 v38, 0")
    poll_head("L_lq")
    a(f"ds_read_b32 v36, v38 offset:{LQF}")
    for j in range(3):
        a(f"ds_read_b128 v[{ACC+4*j}:{ACC+4*j+3}], v3 offset:{LQ+128*j}")
    a("s_waitcnt lgkmcnt(0)")
    a("v_cmp_eq_u32 vcc, -1, v36")
    poll_tail("L_lq", 2)
    stamp(3)
    for t in range(8):
        txt = f"v_mov_b32 v{S+t}, 0\n" + "\n".join(f"v_dot2c_f32_bf16 v{S+t}, v{KV+12*t+k}, v{ACC+k}" for k in range(12))
        while 3 * t + 2 > landed[0]:
            assert cur[0] < 24 + 3 * t
            loads_until(cur[0] + 1)
        a(txt)
        if t < 7:
            assert cur[0] < 24 + 3 * (t + 1)
            loads_until(cur[0] + 1)
    work = []
    for ctl in ("quad_perm:[1,0,3,2]", "quad_perm:[2,3,0,1]", "row_half_mirror"):
        work.append((-1, "\n".join(f"v_add_f32_dpp v{r}, v{r}, v{r} {ctl} {DM}" for r in range(S, S + 8))))
    work.append((-1, "\n".join(f"v_cvt_pk_bf16_f32 v{S+t}, 0, v{S+t}" for t in range(8))))
    work.append((-1, "\n".join(f"v_mul_f32 v{S+t}, {SCALE}, v{S+t}" for t in range(8))))
    work.append((-1, "\n".join(f"v_cvt_pk_bf16_f32 v{S+t}, 0, v{S+t}" for t in range(8))))
    hi = (f"row_ror:8 {DM}", "row_bcast:15 row_mask:0xa bank_mask:0xf", "row_bcast:31 row_mask:0xc bank_mask:0xf")
    work.append((-1, f"v_max3_f32 v36, v{S}, v{S+1}, v{S+2}\nv_max3_f32 v36, v36, v{S+3}, v{S+4}\nv_max3_f32 v36, v36, v{S+5}, v{S+6}\nv_max_f32 v36, v36, v{S+7}\n"
                 + "\n".join(f"v_max_f32_dpp v36, v36, v36 {c}" for c in hi) + "\nv_readlane_b32 s34, v36, 63"))
    for t in range(8):
        work.append((-1, f"v_subrev_f32 v{ACC+t}, s34, v{S+t}\nv_mul_f32 v{ACC+t}, {LOG2E}, v{ACC+t}\nv_exp_f32 v{ACC+t}, v{ACC+t}"))
    work.append((-1, f"s_lshl_b32 s35, s26, 3\nv_mov_b32 v38, s35\nv_add_f32 v37, v{ACC}, v{ACC+1}\n" + "\n".join(f"v_add_f32 v37, v37, v{ACC+t}" for t in range(2, 8))
                 + "\n" + "\n".join(f"v_add_f32_dpp v37, v37, v37 {c}" for c in hi)
                 + f"\ns_lshl_b64 exec, 1, 63\nds_write_b64 v38, v[36:37] offset:{LMW}\ns_mov_b64 exec, -1"))
    chunk_save = chunk
    chunk = 2 * chunk
    run(work, 48)
    chunk = chunk_save
    stamp(4)
    loads_until(24 + jb)
    stamp(5)
    a("v_mov_b32 v38, 0")
    poll_head("L_lm")
    a(f"ds_read_b128 v[{WR}:{WR+3}], v38 offset:{LML}")
    a("s_waitcnt lgkmcnt(0)")
    a(f"v_max_u32 v36, v{WR+1}, v{WR+3}\nv_cmp_eq_u32 vcc, -1, v36")
    poll_tail("L_lm", 2)
    stamp(6)
    a(f"v_mov_b32 v36, v{WR}\nv_mov_b32 v37, v{WR+1}\nv_readfirstlane_b32 s45, v{WR+3}")
    a(f"s_lshl3_add_u32 s34, s30, s29\ns_lshl_b32 s34, s34, 4\ns_add_u32 s34, s34, {TRG}\nv_mov_b32 v{WR+4}, s34")
    hooks[24 + jt] = f"s_cmp_eq_u32 s26, {tw}\ns_cbranch_scc0 L_nosig\ns_mov_b64 exec, 1\nglobal_store_dword v{WR+4}, v{WR+2}, s[24:25] sc1\ns_mov_b64 exec, -1\nL_nosig:"
    assert jt >= jb
    work = []
    for t in range(8):
        work.append((-1, f"v_sub_f32 v{S+t}, v{S+t}, v36\nv_mul_f32 v{S+t}, {LOG2E}, v{S+t}\nv_exp_f32 v{S+t}, v{S+t}"))
    for t in range(8):
        work.append((-1, f"v_mul_f32 v{S+t}, v{S+t}, v37\nv_cvt_pk_bf16_f32 v{S+t}, v{S+t}, v{S+t}"))
    for t in range(8):
        A = A0 if t % 2 == 0 else A1
        txt = "\n".join(f"v_and_b32 v{A+r}, v{4+r}, v{S+t}" for r in range(4))
        for j in range(3):
            acc = ACC + 4 * j
            B = KV + 12 * t + 4 * j
            txt += f"\nv_mfma_f32_16x16x32_bf16 v[{acc}:{acc+3}], v[{A}:{A+3}], v[{B}:{B+3}], " + ("0" if t == 0 else f"v[{acc}:{acc+3}]")
        work.append((24 + 3 * t + 2, txt))
    rest = run(work, 48)
    loads_until(48)
    if hooks:
        a(hooks.popitem()[1])
        a.vm.pop()
    pdone = 8 - len(rest)
    assert 5 <= pdone <= 7, pdone
    stamp(7)
    a(f"s_mul_i32 s34, s26, 1536\ns_add_u32 s34, s34, {LPV}")
    eo_addr(1, "s34", 768)
    a(f"s_lshl_b32 s34, s26, 8\ns_add_u32 s35, s34, {LPV}\nv_lshl_add_u32 v38, v0, 2, s35")
    a(f"s_lshl3_add_u32 s35, s27, s28\ns_mul_i32 s35, s35, 768\ns_add_u32 s35, s35, s34\ns_add_u32 s35, s35, {OP}\nv_lshl_add_u32 v37, v0, 2, s35")
    vm_common = list(a.vm)
    landed_common = landed[0]

    def pv_finish(sfx):
        a("v_mov_b32 v36, 1\nv_mov_b32 v39, 0")
        for t in range(pdone, 8):
            afrag(A0 if t % 2 == 0 else A1, S + t)
            for j in range(3):
                nn = 24 + 3 * t + j
                if nn > landed_common:
                    a.wait_vm(("kv", nn))
                mfma(ACC + 4 * j, A0 if t % 2 == 0 else A1, KV + 12 * t + 4 * j, False)
        stamp(8)
        exec_eo()
        for j in range(3):
            a(f"ds_write_b128 v1, v[{ACC+4*j}:{ACC+4*j+3}] offset:{256*j}")
        a(f"s_mov_b64 exec, 1\nds_add_u32 v39, v36 offset:{LCNT}")
        exec_all()
        a(f"s_cmp_lt_u32 s26, 3\ns_cbranch_scc0 L_pub_{sfx}")
        poll_head(f"L_pc_{sfx}")
        a("s_waitcnt lgkmcnt(4)")
        a(f"ds_read_b32 v36, v39 offset:{LCNT}")
        for k in range(8):
            a(f"ds_read2st64_b32 v[{72+2*k}:{73+2*k}], v38 offset0:{6*k} offset1:{6*k+3}")
        a("s_sub_u32 s41, s41, 1")
        a(f"s_cbranch_scc1 L_pub_{sfx}")
        a(f"s_waitcnt lgkmcnt({0 if diag else 8})")
        a(f"v_cmp_ne_u32 vcc, 7, v36\ns_cbranch_vccnz L_pc_{sfx}")
        sum16(72)
        if local:
            a(f"s_cmp_eq_u32 s45, 1\ns_cbranch_scc0 L_far_{sfx}")
            a("global_store_dword v37, v72, s[24:25]")
        else:
            a("global_store_dword v37, v72, s[24:25] sc1")
        a(f"L_pub_{sfx}:")
        stamp(9)

    a("s_cmp_lt_u32 s2, 160\ns_cbranch_scc1 L_wo")
    a(f"s_cmp_lt_u32 s2, {160+NF}\ns_cbranch_scc1 L_ffn")
    pv_finish("none")
    finish()
    far_store("none")

    a("L_wo:")
    a.vm = list(vm_common)
    a("s_bfe_u32 s42, s30, 0x10001\ns_lshl1_add_u32 s42, s29, s42\ns_and_b32 s43, s30, 1\ns_lshl1_add_u32 s43, s28, s43")
    a(f"s_mul_i32 s34, s26, 6144\ns_add_u32 s34, s34, {LW}\nv_lshl_add_u32 v164, v0, 4, s34")
    a(f"s_lshr_b32 s34, s26, 2\ns_lshl1_add_u32 s34, s42, s34\ns_mul_i32 s34, s34, 6144\ns_and_b32 s35, s26, 3\ns_mul_i32 s35, s35, 192\ns_add_u32 s34, s34, s35\ns_add_u32 s34, s34, {OP}")
    a("v_mul_u32_u24 v160, 48, v3\nv_mad_u32_u24 v160, v2, 24, v160\nv_add_u32 v160, s34, v160")
    a(f"s_lshl_b32 s34, s26, 9\ns_add_u32 s34, s34, {LWO}")
    eo_addr(161, "s34", 256)
    a(f"v_lshlrev_b32 v162, 2, v0\ns_mul_i32 s34, s42, 2560\ns_lshl_b32 s35, s43, 8\ns_add_u32 s34, s34, s35\ns_add_u32 s34, s34, {YP}\nv_add_u32 v163, s34, v162\nv_add_u32 v162, {LWO}, v162")
    pv_finish("wo")
    a("s_barrier")
    for i in range(6):
        a(f"ds_read_b128 v[{WR+4*i}:{WR+4*i+3}], v164 offset:{1024*i}")
    mpoll("L_po", ["global_load_dwordx4 v[88:91], v160, s[24:25] sc1", "global_load_dwordx2 v[92:93], v160, s[24:25] offset:16 sc1"], range(88, 94), sl1)
    stamp(10)
    a("s_waitcnt lgkmcnt(0)")
    red8("v_add_f32", range(88, 94))
    for i in range(6):
        a(f"v_cvt_pk_bf16_f32 v{88+i}, v{88+i}, v{88+i}")
    gemv_chain([88 + i for i in range(6)], [WR + 4 * i for i in range(6)], ACC)
    exec_eo()
    a(f"ds_write_b128 v161, v[{ACC}:{ACC+3}]")
    exec_all()
    a("s_waitcnt lgkmcnt(0)\ns_barrier")
    a("s_cmp_eq_u32 s26, 0\ns_cbranch_scc0 L_fin")
    read16_sum(72, 162, [(2 * k, 2 * k + 1) for k in range(8)])
    a("global_store_dword v163, v72, s[24:25] sc1")
    stamp(11)
    a("L_fin:")
    finish()
    giveup("L_po")
    far_store("wo")

    a("L_ffn:")
    a.vm = list(vm_common)
    X, XA, GA, SA, F1W, F1R, FPA, H, Z0, Z1, SR, W1A, W2A, M0, G = 40, 41, 42, 43, 44, 45, 46, 47, 48, 49, 50, 51, 52, 54, 88
    a("s_sub_u32 s42, s2, 160")
    a(f"v_lshrrev_b32 v56, 4, v0\nv_and_b32 v57, 15, v0\nv_and_b32 v58, 3, v0")
    a(f"s_lshl_b32 s34, s26, 13\ns_add_u32 s34, s34, {LW}\nv_lshl_add_u32 v{W1A}, v0, 4, s34")
    a(f"v_lshl_add_u32 v{XA}, v57, 2, v56\nv_lshlrev_b32 v{XA}, 1, v{XA}\ns_lshl_b32 s34, s26, 7\nv_add_u32 v{XA}, s34, v{XA}")
    a(f"s_lshl_b32 s34, s26, 8\ns_add_u32 s35, s34, {YP+3840}")
    a(f"v_mul_u32_u24 v{GA}, 10240, v56\nv_lshl_add_u32 v{GA}, v57, 4, v{GA}\nv_add_u32 v{GA}, s35, v{GA}")
    a(f"s_lshl_b32 s35, s26, 3\nv_mov_b32 v{SA}, s35\nv_lshlrev_b32 v{SR}, 3, v57")
    a(f"s_mul_i32 s35, s26, 768\nv_mul_u32_u24 v{F1W}, 192, v56\nv_lshl_add_u32 v{F1W}, v58, 5, v{F1W}\nv_add_u32 v{F1W}, s35, v{F1W}")
    a(f"v_mul_u32_u24 v{F1R}, 12, v3\nv_lshl_add_u32 v{F1R}, v2, 4, v{F1R}")
    a("v_and_b32 v59, 1, v56\nv_lshlrev_b32 v59, 2, v59\nv_and_b32 v60, 2, v56\nv_add_u32 v59, v59, v60\nv_lshl_add_u32 v59, v57, 3, v59")
    a(f"s_mul_i32 s35, s42, 2560\ns_add_u32 s35, s35, s34\ns_add_u32 s35, s35, {FP}\nv_lshl_add_u32 v{FPA}, v59, 2, s35")
    a(f"s_lshl_b32 s35, s42, 7\ns_add_u32 s35, s35, {FP+2560}\nv_mul_u32_u24 v{Z0}, 15360, v2\nv_add3_u32 v{Z0}, v{Z0}, v3, s35\nv_add_u32 v{Z1}, 7680, v{Z0}")
    a(f"v_or_b32 v{M0}, v4, v6\nv_or_b32 v{M0+1}, v5, v7")
    a("s_cmp_lt_u32 s26, 8\ns_cbranch_scc1 L_ffn_stream")
    a("s_waitcnt vmcnt(0)")
    stamp(9)
    a("s_branch L_ffn_poll")
    a("L_ffn_stream:")
    a.vm = list(vm_common)
    pv_finish("ffn")
    a("L_ffn_poll:")
    a("s_barrier")
    a(f"global_load_ushort v{X}, v{XA}, s[4:5]")
    for i in range(8):
        a(f"ds_read_b128 v[{WR+4*i}:{WR+4*i+3}], v{W1A} offset:{1024*i}")
    mpoll("L_py", [f"global_load_dwordx4 v[{G+4*k}:{G+4*k+3}], v{GA}, s[24:25] offset:{2560*k-3840} sc1" for k in range(4)], range(G, G + 16), sl2)
    stamp(10)
    for p, q in ((0, 4), (2, 6), (8, 12), (10, 14), (0, 8), (2, 10)):
        pk(G + p, G + q)
    transpose_reduce(G)
    a(f"v_cvt_pk_bf16_f32 v{G}, 0, v{G}\nv_lshlrev_b32 v{X}, 16, v{X}\nv_add_f32 v{H}, v{X}, v{G}\nv_cvt_pk_bf16_f32 v{H}, 0, v{H}")
    a(f"v_mul_f32 v{G+1}, v{H}, v{H}")
    a(f"v_add_f32_dpp v{G}, v{H}, v{H} quad_perm:[1,0,3,2] {DM}")
    a(f"v_add_f32_dpp v{G+1}, v{G+1}, v{G+1} quad_perm:[1,0,3,2] {DM}")
    for ctl in ("quad_perm:[2,3,0,1]", "row_half_mirror"):
        for r in (G, G + 1):
            a(f"v_add_f32_dpp v{r}, v{r}, v{r} {ctl} {DM}")
    red_hi("v_add_f32", (G, G + 1))
    a(f"s_lshl_b64 exec, 1, 63\nds_write_b64 v{SA}, v[{G}:{G+1}] offset:{LST}")
    exec_all()
    a("s_waitcnt lgkmcnt(0)\ns_barrier")
    a(f"ds_read_b64 v[{G}:{G+1}], v{SR} offset:{LST}")
    a("s_waitcnt lgkmcnt(0)")
    for ctl in ("quad_perm:[1,0,3,2]", "quad_perm:[2,3,0,1]", "row_half_mirror", "row_ror:8"):
        for r in (G, G + 1):
            a(f"v_add_f32_dpp v{r}, v{r}, v{r} {ctl} {DM}")
    ln_scalars(G, G + 1, G + 2, G + 3)
    a(f"v_sub_f32 v{G}, v{H}, v{G+2}\nv_cvt_pk_bf16_f32 v{G}, 0, v{G}\nv_mul_f32 v{G}, v{G}, v{G+3}\nv_cvt_pk_bf16_f32 v{G}, v{G}, v{G}")
    stamp(11)
    for i in range(4):
        for r in range(2):
            a(f"v_and_b32_dpp v{A0+2*i+r}, v{G}, v{M0+r} quad_perm:[{i},{i},{i},{i}] {DM}")
    for i in range(4):
        for hf in range(2):
            acc = ACC + 4 * hf
            c = "0" if i == 0 else f"v[{acc}:{acc+3}]"
            a(f"v_mfma_f32_16x16x16_bf16 v[{acc}:{acc+3}], v[{A0+2*i}:{A0+2*i+1}], v[{WR+4*i+2*hf}:{WR+4*i+2*hf+1}], {c}")
    a("s_mov_b32 exec_lo, 0x00f0000f\ns_mov_b32 exec_hi, 0xf0000f00")
    a(f"ds_write_b128 v{F1W}, v[{ACC}:{ACC+3}] offset:{LF1}\nds_write_b128 v{F1W}, v[{ACC+4}:{ACC+7}] offset:{LF1+16}")
    exec_all()
    a("s_waitcnt lgkmcnt(0)\ns_barrier")
    for k in range(5):
        a(f"ds_read_b128 v[{G+4*k}:{G+4*k+3}], v{F1R} offset:{LF1+1536*k}")
    for k in range(1, 5):
        a(f"s_waitcnt lgkmcnt({0 if diag else 4-k})")
        pk(G, G + 4 * k)
        pk(G + 2, G + 4 * k + 2)
    red8("v_add_f32", range(G, G + 4))
    for i in range(4):
        a(f"v_max_f32 v{G+i}, 0, v{G+i}")
    for i in range(4):
        a(f"v_cvt_pk_bf16_f32 v{G+i}, v{G+i}, v{G+i}")
    stamp(12)
    gemv_chain([G + i for i in range(4)], [WR + 16 + 4 * i for i in range(4)], ACC)
    eo_combine(ACC)
    a("s_mov_b32 exec_lo, 0x00ff00ff\ns_mov_b32 exec_hi, 0x00ff00ff")
    a(f"global_store_dwordx2 v{FPA}, v[{ACC}:{ACC+1}], s[24:25] sc1")
    exec_all()
    stamp(13)
    a("s_lshr_b32 s34, s42, 1\ns_cmp_eq_u32 s26, s34\ns_cbranch_scc0 L_notfinal")
    a("s_and_b32 s34, s42, 1\ns_lshl_b32 s34, s34, 3\ns_lshl_b32 s34, 0x00ff00ff, s34")
    poll_head("L_pz")
    for k in range(6):
        a(f"global_load_dwordx4 v[{G+4*k}:{G+4*k+3}], v{Z0+k//3}, s[24:25] offset:{2560*(k%3)-2560} sc1")
    poll_count("L_pz")
    for k in range(1, 6):
        a(f"s_waitcnt vmcnt({5-k})")
        pk(G, G + 4 * k)
        pk(G + 2, G + 4 * k + 2)
    transpose_reduce(G)
    a(f"v_add_f32_dpp v{G}, v{G}, v{G} row_ror:8 {DM}")
    a(f"v_cmp_u_f32 vcc, v{G}, v{G}")
    poll_tail("L_pz")
    a(f"v_cvt_pk_bf16_f32 v{G}, 0, v{G}\nv_add_f32 v{G}, v{H}, v{G}\nv_cvt_pk_bf16_f32 v{G}, v{G}, v{G}")
    a("s_mov_b32 exec_lo, s34\ns_mov_b32 exec_hi, s34")
    a(f"global_store_short v{XA}, v{G}, s[20:21]")
    stamp(14)
    finish()
    giveup("L_py")
    far_store("ffn")
    giveup("L_pz")
    a("L_notfinal:")
    a("s_cmp_eq_u32 s2, 160\ns_cbranch_scc0 L_fin2\ns_cmp_eq_u32 s26, 9\ns_cbranch_scc0 L_fin2")
    a(f"v_mov_b32 v36, {EPOCH}\nv_mov_b32 v37, s40\ns_mov_b64 exec, 1\nglobal_store_dword v36, v37, s[24:25] sc1")
    a("L_fin2:")
    finish()
    if diag:
        a("L_stamps:")
        exec_all()
        a("s_waitcnt vmcnt(0)")
        stamp(15)
        a("s_waitcnt lgkmcnt(0)")
        a(f"s_mul_i32 s34, s2, 10\ns_add_u32 s34, s34, s26\ns_lshl_b32 s34, s34, 7\ns_add_u32 s34, s34, {STAMP}\nv_mov_b32 v36, s34")
        for k in range(32):
            a(f"v_mov_b32 v{40+k}, s{64+k}")
        a("s_mov_b64 exec, 1")
        for k in range(8):
            a(f"global_store_dwordx4 v36, v[{40+4*k}:{43+4*k}], s[24:25] offset:{16*k}")
    a("L_end:")
    a("s_endpgm")
    a("L_code_end:")
    a.raw(f""".section .rodata,"a"
.p2align 6
.amdhsa_kernel {NAME}_kernel
  .amdhsa_next_free_vgpr 168
  .amdhsa_next_free_sgpr 96
  .amdhsa_accum_offset 168
  .amdhsa_group_segment_fixed_size 0
  .amdhsa_kernarg_size 88
  .amdhsa_user_sgpr_count 2
  .amdhsa_user_sgpr_kernarg_segment_ptr 1
  .amdhsa_system_sgpr_workgroup_id_x 1
  .amdhsa_float_denorm_mode_32 3
.end_amdhsa_kernel""")
    return a.text()


if __name__ == "__main__":
    import json
    out = sys.argv[1]
    kw = json.loads(sys.argv[2]) if len(sys.argv) > 2 else {}
    open(out, "w").write(gen(**kw))
```

```python
import sys
sys.path.insert(0, "exp")
import gen5
kw = {"jt":20, "jb":18, "d":3}
base = gen5.gen(**kw)
store = "    global_store_short v41, v88, s[20:21]\n"
assert base.count(store) == 1
def linger(cond):
    return cond + """    s_memrealtime s[94:95]
    s_waitcnt lgkmcnt(0)
L_linger:
    s_memrealtime s[36:37]
    s_waitcnt lgkmcnt(0)
    s_sub_u32 s35, s36, s94
    s_cmp_lt_u32 s35, 500
    s_cbranch_scc1 L_linger
L_nolinger:
"""
only = lambda wg: f"    s_cmp_eq_u32 s2, {wg}\n    s_cbranch_scc0 L_nolinger\n"
open("q_base.s", "w").write(base)
open("q_after160.s", "w").write(base.replace(store, store + linger(only(160))))
open("q_after165.s", "w").write(base.replace(store, store + linger(only(165))))
open("q_afterall.s", "w").write(base.replace(store, store + linger("")))
open("q_beforeall.s", "w").write(base.replace(store, linger("") + store))
x = "    global_load_ushort v40, v41, s[4:5]\n"
assert base.count(x) == 1
open("q_touch.s", "w").write(base.replace(x, x + "    global_load_ushort v53, v41, s[20:21]\n"))
```

```python
import sys
sys.path.insert(0, "exp")
from asmlib import Asm

NAME = "sequential_preLN__sliding_block_cached__dense_activation_relu__decode"
HEADER = open("cdna_kernels/" + NAME + ".s.ref").read().split("; Override launch")[0]

EPOCH, QP, ML, OP, TRG, FLG, PRB, YP, FP, STAMP = 0, 0x2000, 0x42000, 0x4a000, 0x7a000, 0x7c000, 0x80000, 0x84000, 0xa4000, 0x100000
assert YP % 16384 == 0 and FP % 16384 == 0 and PRB % 16384 == 0 and FP + 20 * 16384 <= STAMP
LQ, LML, LQF, LCNT, LMW, LQP, LPV, LWO, LST, LF1, LW = 0, 512, 528, 532, 576, 1024, 4096, 16384, 20480, 20736, 28672
LCH = 536
FL2 = TRG + 0x1000
LDS_BYTES = LW + 49152
KV, WR, S, ACC, A0, A1 = 40, 136, 8, 16, 28, 32
LOG2E, SCALE, EPS, INV640 = "0x3fb8aa3b", "0x3d93cd3a", "0x3727c5ac", "0x3acccccd"
DM = "row_mask:0xf bank_mask:0xf"
HI = (f"row_ror:8 {DM}", "row_bcast:15 row_mask:0xa bank_mask:0xf", "row_bcast:31 row_mask:0xc bank_mask:0xf")
NF = 48


def gen(d=3, e0=2, kb=18, jb=18, jt=19, fast=1, fastn=(6, 42), near=True, nprobe=5, wide=(0, 0, 4), rots=False, ackwait=True, sl3=0, w1f="", rot=True, fin=(6, 5), pat="gint2", diag=False, prefetch=True, local=True,
        sl1=1, sl2=1, wtrig=1, dw=8, dwf=40, ntrg=8, qtry=6, slt=4, vflag=False, chunk=16, cap=262144, stamps=None, abl=()):
    a = Asm()
    SS, SW, ST = {"blk": (64 * 3072, 8 * 3072, 3072), "wint": (64 * 3072, 3072, 8 * 3072),
                  "gint": (8 * 3072, 3072, 64 * 3072), "gint2": (3072, 8 * 3072, 64 * 3072)}[pat]

    def stamp(k):
        if diag and (stamps is None or k in stamps or k in (0, 15)):
            a(f"s_memrealtime s[{64+2*k}:{65+2*k}]")

    def lg(n):
        a(f"s_waitcnt lgkmcnt({0 if diag else n})")

    def finish(late=True):
        a(("s_branch L_stamps" if late else "s_branch L_stamps_now") if diag else "s_endpgm")

    def masks():
        a("v_and_b32 v36, 1, v0\nv_mov_b32 v37, 0xffff\nv_lshlrev_b32 v36, 4, v36\nv_lshlrev_b32 v36, v36, v37\nv_bfe_u32 v37, v0, 1, 2")
        for r in range(4):
            a(f"v_cmp_eq_u32 vcc, {r}, v37")
            a(f"v_cndmask_b32 v{4+r}, 0, v36, vcc")

    def afrag(dst, pp):
        for r in range(4):
            a(f"v_and_b32 v{dst+r}, v{4+r}, v{pp}")

    def mfma(acc, A, B, first):
        c = "0" if first else f"v[{acc}:{acc+3}]"
        a(f"v_mfma_f32_16x16x32_bf16 v[{acc}:{acc+3}], v[{A}:{A+3}], v[{B}:{B+3}], {c}")

    def gemv_chain(pps, Bs, acc):
        AF = (A0, A1)
        afrag(AF[0], pps[0])
        for i in range(len(pps)):
            if i + 1 < len(pps):
                afrag(AF[(i + 1) % 2], pps[i + 1])
            mfma(acc, AF[i % 2], Bs[i], i == 0)

    def red8(op, regs):
        for ctl in ("quad_perm:[1,0,3,2]", "quad_perm:[2,3,0,1]", "row_half_mirror"):
            for r in regs:
                a(f"{op}_dpp v{r}, v{r}, v{r} {ctl} {DM}")

    def red_hi(op, regs):
        for ctl in HI:
            for r in regs:
                a(f"{op}_dpp v{r}, v{r}, v{r} {ctl}")

    def ln_scalars(sm, sq, mb, rinv):
        a(f"v_mul_f32 v{mb}, {INV640}, v{sm}")
        a(f"v_mul_f32 v{rinv}, {INV640}, v{sq}")
        a(f"v_fma_f32 v{rinv}, -v{mb}, v{mb}, v{rinv}")
        a(f"v_max_f32 v{rinv}, 0, v{rinv}")
        a(f"v_cvt_pk_bf16_f32 v{rinv}, 0, v{rinv}")
        a(f"v_add_f32 v{rinv}, {EPS}, v{rinv}")
        a(f"v_cvt_pk_bf16_f32 v{rinv}, 0, v{rinv}")
        a(f"v_sqrt_f32 v{rinv}, v{rinv}")
        a(f"v_cvt_pk_bf16_f32 v{mb}, 0, v{mb}")
        a(f"v_cvt_pk_bf16_f32 v{rinv}, 0, v{rinv}")
        a(f"v_rcp_f32 v{rinv}, v{rinv}")

    def exec_eo():
        a("s_mov_b32 exec_lo, 0x00ff00ff\ns_mov_b32 exec_hi, 0xff00ff00")

    def exec_all():
        a("s_mov_b64 exec, -1")

    def eo_addr(dst, base_s, half_stride):
        a(f"v_lshrrev_b32 v{dst}, 5, v0")
        a(f"v_mul_u32_u24 v{dst}, {half_stride}, v{dst}")
        a(f"v_lshl_add_u32 v{dst}, v3, 1, v{dst}")
        a("v_and_b32 v39, 16, v0")
        a(f"v_add3_u32 v{dst}, v{dst}, v39, {base_s}")

    def pk(p, q):
        a(f"v_pk_add_f32 v[{p}:{p+1}], v[{p}:{p+1}], v[{q}:{q+1}]")

    def sum16(base):
        for k, w in ((0, 6), (4, 4), (8, 2), (12, 0)):
            lg(w)
            pk(base + k, base + k + 2)
            if k in (4, 12):
                pk(base + k - 4, base + k)
        pk(base, base + 8)
        a(f"v_add_f32 v{base}, v{base}, v{base+1}")

    def sum8(base):
        lg(2)
        pk(base, base + 2)
        lg(0)
        pk(base + 4, base + 6)
        pk(base, base + 4)
        a(f"v_add_f32 v{base}, v{base}, v{base+1}")

    def poll_head(lbl):
        a(f"s_mov_b32 s41, {cap}")
        a(f"{lbl}:")

    def poll_tail(lbl, sleep):
        a(f"s_cbranch_vccz {lbl}_ok")
        a(f"s_sleep {sleep}")
        a("s_sub_u32 s41, s41, 1")
        a(f"s_cbranch_scc0 {lbl}")
        a(f"{lbl}_ok:")

    def poll_count(lbl):
        a("s_sub_u32 s41, s41, 1")
        a(f"s_cbranch_scc1 {lbl}_giveup")

    def giveup(lbl):
        a(f"{lbl}_giveup:")
        a("s_waitcnt vmcnt(0)")
        a(f"s_branch {lbl}_ok")

    def mpoll(lbl, loads, regs, sleep):
        a(f"s_mov_b32 s41, {cap}")
        if sleep:
            a(f"s_branch {lbl}_go")
        a(f"{lbl}:")
        if sleep:
            a(f"s_sleep {sleep}")
            a(f"{lbl}_go:")
        for ld in loads:
            a(ld)
        poll_count(lbl)
        a("s_waitcnt vmcnt(0)")
        regs = list(regs)
        a(f"v_max3_u32 v36, v{regs[0]}, v{regs[1]}, v{regs[2]}")
        a(f"v_max3_u32 v39, v{regs[3]}, v{regs[4]}, v{regs[5]}")
        rest = regs[6:]
        k = 0
        while len(rest) >= 2:
            t = (36, 39)[k]
            a(f"v_max3_u32 v{t}, v{t}, v{rest[0]}, v{rest[1]}")
            rest = rest[2:]
            k ^= 1
        assert not rest
        a("v_max_u32 v36, v36, v39")
        a("v_cmp_eq_u32 vcc, -1, v36")
        a("s_and_b64 exec, exec, vcc")
        a(f"s_cbranch_scc1 {lbl}")
        a(f"{lbl}_ok:")
        exec_all()

    def transpose_reduce(r):
        a(f"v_permlane32_swap_b32 v{r}, v{r+2}")
        a(f"v_permlane32_swap_b32 v{r+1}, v{r+3}")
        pk(r, r + 2)
        a(f"v_permlane16_swap_b32 v{r}, v{r+1}")
        a(f"v_add_f32 v{r}, v{r}, v{r+1}")

    def eo_combine(acc):
        a(f"v_permlane32_swap_b32 v{acc}, v{acc+2}")
        a(f"v_permlane32_swap_b32 v{acc+1}, v{acc+3}")
        a(f"v_add_f32_dpp v{acc}, v{acc+2}, v{acc} row_ror:8 {DM}")
        a(f"v_add_f32_dpp v{acc+1}, v{acc+3}, v{acc+1} row_ror:8 {DM}")

    def role_vcc():
        if fast:
            a(f"s_sub_u32 s35, s2, 160\ns_cmp_lt_u32 s35, {NF}\ns_cselect_b64 vcc, -1, 0")

    def make_tag():
        a("s_mul_i32 s40, s40, 0x9e3779b1\ns_add_u32 s40, s40, 0x7f4a7c15")

    landed = [-1]
    cur = [0]
    hooks = {}
    W = [(wide[2] if wide[0] <= n < wide[1] else d) if n < 48 - fin[0] else fin[1] for n in range(48)]

    def kvload(n):
        if n in hooks:
            a(hooks.pop(n))
        dn = W[n]
        if fast and fastn[0] <= n < fastn[1]:
            a(f"s_cbranch_vccnz L_fast{n}")
            a.wait_vm(("kv", n - dn))
            a(f"L_fast{n}:")
            dn += fast
        if n - dn > landed[0]:
            a.wait_vm(("kv", n - dn))
            landed[0] = n - dn
        base = 6 if n < 24 else 8
        m = n % 24
        r = KV + 4 * m
        a(f"global_load_dwordx4 v[{r}:{r+3}], v1, s[{base}:{base+1}] offset:{128*(m%3)} nt", ("kv", n))
        if m % 3 == 2 and m < 23:
            if rots:
                a(f"s_cmp_eq_u32 s28, {7 - m // 3}\ns_cselect_b32 s38, s39, s37\ns_add_u32 s{base}, s{base}, s38\ns_addc_u32 s{base+1}, s{base+1}, 0")
            else:
                a(f"s_add_u32 s{base}, s{base}, s37\ns_addc_u32 s{base+1}, s{base+1}, 0")

    def loads_until(n):
        while cur[0] < n:
            kvload(cur[0])
            cur[0] += 1

    def run(work, lines):
        k = 0
        while k < len(work):
            cnt = 0
            while k < len(work) and work[k][0] <= landed[0] and (cnt < lines or cur[0] >= 48):
                a(work[k][1])
                cnt += work[k][1].count("\n") + 1
                k += 1
            if k < len(work):
                if cur[0] >= 48:
                    return work[k:]
                loads_until(cur[0] + 1)
        return []

    a.raw(HEADER.rstrip())
    a.raw(f"; @launch grid=(256,1,1) block=(640,1,1) lds={LDS_BYTES}")
    a.raw('.amdgcn_target "amdgcn-amd-amdhsa--gfx950"\n.text')
    a.raw(f".globl {NAME}_kernel\n.p2align 8\n.type {NAME}_kernel,@function\n{NAME}_kernel:")
    a("L_start:")
    stamp(0)
    a("s_load_dwordx16 s[4:19], s[0:1], 0")
    a("s_load_dwordx4 s[20:23], s[0:1], 64")
    a("s_load_dwordx2 s[24:25], s[0:1], 80")
    a("s_cmp_ge_u32 s2, 256\ns_cbranch_scc1 L_end")
    a("v_lshrrev_b32 v1, 6, v0")
    a("v_and_b32 v0, 63, v0")
    a("v_readfirstlane_b32 s26, v1")
    a("s_and_b32 s29, s2, 7\ns_lshr_b32 s30, s2, 3\ns_and_b32 s27, s30, 3\ns_lshl2_add_u32 s27, s29, s27\ns_lshr_b32 s28, s30, 2")
    a("v_lshrrev_b32 v2, 3, v0\nv_and_b32 v3, 7, v0\nv_lshlrev_b32 v3, 4, v3")
    a("s_cmp_lt_u32 s26, 8\ns_cbranch_scc0 L_help")
    a("v_mul_u32_u24 v1, 384, v2\nv_add_u32 v1, v1, v3")
    a(f"s_mul_i32 s34, s27, 12582912\ns_mul_i32 s35, s28, {SS}\ns_add_u32 s34, s34, s35\ns_mul_i32 s35, s26, {SW}\ns_add_u32 s34, s34, s35\ns_add_u32 s34, s34, 11010048\ns_mov_b32 s37, {ST + (SS if rots else 0)}")
    if rots:
        a(f"s_mov_b32 s39, {ST - 7 * SS}")
    a("s_waitcnt lgkmcnt(0)")
    a("s_add_u32 s6, s6, s34\ns_addc_u32 s7, s7, 0")
    loads_until(e0)
    vm_stream = list(a.vm)
    a("s_branch L_stream")

    a("L_help:")
    a("s_setprio 3")
    a("s_cmp_eq_u32 s26, 8\ns_cbranch_scc1 L_w8")
    a(f"s_mul_i32 s34, s2, 768\ns_add_u32 s34, s34, {OP}\nv_lshlrev_b32 v1, 4, v0\nv_add_u32 v36, s34, v1")
    a("v_mov_b32 v8, -1\nv_mov_b32 v9, -1\nv_mov_b32 v10, -1\nv_mov_b32 v11, -1")
    a(f"v_and_b32 v15, 15, v0\nv_lshlrev_b32 v15, 3, v15\nds_write_b64 v15, v[8:9] offset:{LML}")
    a(f"s_lshl_b32 s34, s29, 14\ns_bfe_u32 s35, s30, 0x10001\ns_mul_i32 s35, s35, 10\ns_lshl1_add_u32 s35, s28, s35\ns_and_b32 s36, s30, 1\ns_add_u32 s35, s35, s36\ns_lshl_b32 s35, s35, 8\ns_add_u32 s34, s34, s35\ns_add_u32 s34, s34, {YP}")
    a(f"s_lshl_b32 s35, s2, 7\ns_add_u32 s35, s35, {TRG - 160 * 128}\ns_cmp_lt_u32 s2, 160\ns_cselect_b32 s34, s34, s35\ns_cselect_b32 s35, -1, 0xff")
    a("v_bfe_u32 v37, v0, 4, 1\nv_lshlrev_b32 v37, 13, v37\nv_lshl_add_u32 v37, v15, 1, v37\nv_add_u32 v37, s34, v37")
    a("s_cmp_lt_u32 s2, 166")
    a("s_waitcnt lgkmcnt(0)")
    if "noclr" not in abl:
        a("s_mov_b32 exec_hi, 0xffff\nglobal_store_dwordx4 v36, v[8:11], s[24:25] sc1")
        a("s_cbranch_scc0 L_reset_done")
        a("s_mov_b32 exec_lo, s35\ns_mov_b32 exec_hi, 0\nglobal_store_dwordx4 v37, v[8:11], s[24:25] sc1")
        a("L_reset_done:")
        exec_all()
    a("s_barrier")
    a("s_branch L_w9")

    a("L_w8:")
    a.vm = []
    a("s_mov_b32 s34, 122880\ns_mul_i32 s35, s27, 384\ns_mul_i32 s36, s28, 983040\ns_add_u32 s35, s35, s36\ns_mul_i32 s36, s28, 160\ns_movk_i32 s37, 12288")
    a("v_mad_u32_u24 v1, v2, s34, v3")
    a("v_lshlrev_b32 v36, 4, v0\nv_lshlrev_b32 v37, 2, v0\nv_mad_u32_u24 v38, v2, 20, s36")
    a("s_waitcnt lgkmcnt(0)")
    a("s_load_dword s40, s[24:25], 0")
    a("global_load_dwordx4 v[8:11], v36, s[4:5]", "x")
    a("global_load_dword v12, v37, s[4:5] offset:1024", "x")
    a("global_load_dwordx4 v[160:163], v38, s[4:5]", "x")
    a("global_load_dword v164, v38, s[4:5] offset:16", "x")
    a("s_add_u32 s10, s10, s35\ns_addc_u32 s11, s11, 0")
    for t in range(10):
        for j in range(3):
            r = KV + 12 * t + 4 * j
            a(f"global_load_dwordx4 v[{r}:{r+3}], v1, s[10:11] offset:{128*j} nt", ("wq", t))
        if t < 9:
            a("s_add_u32 s10, s10, s37\ns_addc_u32 s11, s11, 0")
    a("s_barrier")
    stamp(1)
    masks()
    a(f"s_movk_i32 s34, {LQP}")
    eo_addr(1, "s34", 768)
    a("v_mov_b32 v13, 0\nv_mov_b32 v14, 0\ns_mov_b32 s34, 0x3f803f80")
    a.wait_vm("x")
    for k in range(5):
        a(f"v_dot2c_f32_bf16 v13, s34, v{8+k}")
        a(f"v_dot2c_f32_bf16 v14, v{8+k}, v{8+k}")
    red8("v_add_f32", (13, 14))
    red_hi("v_add_f32", (13, 14))
    a("v_readlane_b32 s34, v13, 63\nv_readlane_b32 s35, v14, 63")
    a("v_mov_b32 v13, s34\nv_mov_b32 v14, s35")
    ln_scalars(13, 14, 13, 14)
    for k in range(5):
        a(f"v_lshlrev_b32 v8, 16, v{160+k}\nv_and_b32 v9, 0xffff0000, v{160+k}")
        a("v_sub_f32 v8, v8, v13\nv_sub_f32 v9, v9, v13")
        a("v_cvt_pk_bf16_f32 v8, 0, v8\nv_cvt_pk_bf16_f32 v9, 0, v9")
        a("v_mul_f32 v8, v8, v14\nv_mul_f32 v9, v9, v14")
        a("v_cvt_pk_bf16_f32 v8, v8, v8\nv_cvt_pk_bf16_f32 v9, v9, v9")
        afrag(A0, 8)
        afrag(A1, 9)
        a.wait_vm(("wq", 2 * k + 1))
        for h, A in ((0, A0), (1, A1)):
            t = 2 * k + h
            for j in range(3):
                mfma(ACC + 4 * j, A, KV + 12 * t + 4 * j, t == 0)
    a("s_waitcnt lgkmcnt(0)")
    make_tag()
    a("s_getreg_b32 s43, hwreg(HW_REG_XCC_ID, 0, 4)\ns_and_b32 s44, s40, 0xfffffff0\ns_or_b32 s43, s43, s44")
    a(f"s_lshl_b32 s34, s27, 13\ns_add_u32 s34, s34, {QP + 4096}\ns_lshl_b32 s35, s28, 10\ns_add_u32 s35, s35, s34\ns_sub_u32 s35, s35, 4096")
    a("v_lshl_add_u32 v8, v0, 4, s35\nv_lshl_add_u32 v9, v0, 4, s34")
    a(f"v_lshlrev_b32 v10, 2, v0\nv_add_u32 v10, {LQP}, v10")
    exec_eo()
    for j in range(3):
        a(f"ds_write_b128 v1, v[{ACC+4*j}:{ACC+4*j+3}] offset:{256*j}")
    exec_all()
    a("s_waitcnt lgkmcnt(0)")
    for j in range(3):
        a(f"ds_read2st64_b32 v[{ACC+2*j}:{ACC+2*j+1}], v10 offset0:{j} offset1:{3+j}")
    a("v_mov_b32 v39, s43")
    a("s_waitcnt lgkmcnt(0)")
    for j in range(3):
        a(f"v_add_f32 v{36+j}, v{ACC+2*j}, v{ACC+2*j+1}")
    if "noq" in abl:
        a("s_branch L_pq_done")
    a("global_store_dwordx4 v8, v[36:39], s[24:25]" + ("" if local else " sc1"))
    stamp(3)
    poll_head("L_pq")
    for s in range(8):
        a(f"global_load_dwordx4 v[{KV+4*s}:{KV+4*s+3}], v9, s[24:25] offset:{1024*s-4096} sc1")
    a(f"s_cmp_eq_u32 s41, {cap-qtry}\ns_cbranch_scc0 L_pq_wait")
    a("global_store_dwordx4 v8, v[36:39], s[24:25] sc1")
    a("L_pq_wait:")
    a("s_waitcnt vmcnt(0)")
    T = [KV + 4 * s + 3 for s in range(8)]
    for op, r in (("min", 11), ("max", 12)):
        a(f"v_{op}3_u32 v{r}, v{T[0]}, v{T[1]}, v{T[2]}\nv_{op}3_u32 v{r}, v{r}, v{T[3]}, v{T[4]}\nv_{op}3_u32 v{r}, v{r}, v{T[5]}, v{T[6]}\nv_{op}_u32 v{r}, v{r}, v{T[7]}")
    a("v_xor_b32 v11, s43, v11\nv_xor_b32 v12, s43, v12\nv_or_b32 v11, v11, v12\nv_cmp_lt_u32 vcc, 15, v11")
    poll_tail("L_pq", 1)
    a("v_cmp_ne_u32 vcc, 0, v11\ns_cbranch_vccz L_pq_done")
    a("global_store_dwordx4 v8, v[36:39], s[24:25] sc1")
    a("L_pq_done:")
    for s in range(1, 8):
        for j in range(3):
            a(f"v_add_f32 v{KV+j}, v{KV+j}, v{KV+4*s+j}")
    a(f"v_cvt_pk_bf16_f32 v{KV}, v{KV}, v{KV+1}\nv_cvt_pk_bf16_f32 v{KV+2}, v{KV+2}, v{KV+2}")
    a("v_lshlrev_b32 v10, 1, v0")
    a(f"ds_write_b16 v10, v{KV} offset:{LQ}\nds_write_b16_d16_hi v10, v{KV} offset:{LQ+128}\nds_write_b16 v10, v{KV+2} offset:{LQ+256}")
    a("s_waitcnt lgkmcnt(0)")
    a(f"v_mov_b32 v10, 0\nds_write_b32 v10, v10 offset:{LQF}")
    stamp(4)
    if "now" in abl:
        a("s_branch L_helper_done")
    a(f"s_cmp_lt_u32 s2, {160+NF}\ns_cbranch_scc0 L_helper_done")
    a(f"s_mov_b32 m0, {LW}")
    a("s_cmp_lt_u32 s2, 160\ns_cbranch_scc0 L_w8_ffn")
    if "nowo" in abl:
        a("s_branch L_helper_done")
    a("s_bfe_u32 s42, s30, 0x10001\ns_lshl1_add_u32 s42, s29, s42\ns_and_b32 s43, s30, 1\ns_lshl1_add_u32 s43, s28, s43")
    a("s_mul_i32 s34, s42, 491520\ns_lshl_b32 s35, s43, 7\ns_add_u32 s34, s34, s35\ns_add_u32 s44, s12, s34\ns_addc_u32 s45, s13, 0")
    a(f"s_add_u32 s46, s44, {128*1280}\ns_addc_u32 s47, s45, 0")
    a("v_mul_u32_u24 v36, 5120, v2\nv_add_u32 v36, v36, v3\nv_mul_u32_u24 v37, 2560, v2\nv_add_u32 v37, v37, v3\ns_mov_b32 s34, 0")
    if wtrig:
        a("v_lshrrev_b32 v14, 1, v3")
        poll_head("L_wt")
        a(f"ds_read_b64 v[8:9], v14 offset:{LMW}" if wtrig == 1 else f"ds_read_b64 v[8:9], v10 offset:{LML}")
        a("s_waitcnt lgkmcnt(0)\nv_cmp_eq_u32 vcc, -1, v9")
        poll_tail("L_wt", 4)
    stamp(7)
    a("L_w8_wo:")
    for i in range(6):
        a(f"s_waitcnt vmcnt({dw-1})")
        v, b, step = (36, 44, 1280 if i < 3 else 29 * 1280) if i < 4 else (37, 46, 1280 if i < 5 else 15 * 1280)
        a(f"global_load_lds_dwordx4 v{v}, s[{b}:{b+1}] nt")
        a(f"s_add_u32 m0, m0, 1024\ns_add_u32 s{b}, s{b}, {step}\ns_addc_u32 s{b+1}, s{b+1}, 0")
    a("s_add_u32 s34, s34, 1\ns_cmp_eq_u32 s34, 4\ns_cbranch_scc0 L_w8_same")
    a(f"s_add_u32 s44, s44, {64*1280}\ns_addc_u32 s45, s45, 0\ns_add_u32 s46, s46, {128*1280}\ns_addc_u32 s47, s47, 0")
    a("L_w8_same:")
    a("s_cmp_lt_u32 s34, 8\ns_cbranch_scc1 L_w8_wo")
    stamp(8)
    a("s_waitcnt vmcnt(0)")
    stamp(9)
    a("s_barrier")
    if diag:
        a("s_barrier")
    finish()
    a("L_w8_ffn:")
    if "noffnw" in abl:
        a("s_branch L_helper_done")
    a("s_sub_u32 s42, s2, 160\ns_mov_b32 s53, 0\ns_waitcnt lgkmcnt(0)")
    if near:
        a("; time uncached loads of a few lines in each half (unused tails of the FP halves) and keep the half with the")
        a(f"s_and_b32 s34, s42, 3\ns_mul_i32 s34, s34, {5*16384}\ns_add_u32 s34, s34, {FP + 6144}\ns_lshr_b32 s35, s42, 2\ns_lshl_b32 s35, s35, 7")
        for k in range(nprobe):
            a(f"s_add_u32 s36, s35, {384*k}\ns_and_b32 s36, s36, 2047\ns_add_u32 s36, s36, s34\ns_add_u32 s{54+2*k}, s36, {16384*k}\ns_add_u32 s{55+2*k}, s{54+2*k}, 8192")
        for k in range(2 * nprobe):
            a(f"s_load_dword s44, s[24:25], s{54+k} glc")
        a("s_mov_b32 s36, -1\ns_mov_b32 s37, -1")
        a("s_waitcnt lgkmcnt(0)\ns_memtime s[46:47]")
        for k in range(2 * nprobe):
            p, q = (46, 48) if k % 2 == 0 else (48, 46)
            a(f"s_waitcnt lgkmcnt(0)\ns_load_dword s44, s[24:25], s{54+k} glc")
            if k:
                a(f"s_sub_u32 s45, s{p}, s{q}\ns_min_u32 s{36+(k-1)%2}, s{36+(k-1)%2}, s45")
            a(f"s_waitcnt lgkmcnt(0)\ns_memtime s[{q}:{q+1}]")
        a("s_waitcnt lgkmcnt(0)\ns_sub_u32 s45, s46, s48\ns_min_u32 s37, s37, s45")
        a("s_cmp_lt_u32 s37, s36\ns_cselect_b32 s53, 1, 0")
    stamp(5)
    if diag and near:
        a("s_mov_b32 s84, s36\ns_mov_b32 s85, s37\ns_mov_b32 s86, s36\ns_mov_b32 s87, s37")
    a("s_and_b32 s43, s40, -2")
    a("s_cmp_lt_u32 s42, 20\ns_cbranch_scc0 L_nofin")
    a(f"s_lshl1_add_u32 s34, s42, s53\ns_lshl_b32 s34, s34, 13\ns_add_u32 s34, s34, {FP + 3072}\nv_lshl_add_u32 v36, v0, 4, s34")
    a("v_mov_b32 v12, -1\nv_mov_b32 v13, -1\nv_mov_b32 v14, -1\nv_mov_b32 v15, -1")
    for k in range(6):
        a(f"global_store_dwordx4 v36, v[12:15], s[24:25] offset:{1024*k-3072} sc1")
    a(f"s_lshl_b32 s34, s42, 5\ns_add_u32 s34, s34, {FL2}\nv_mov_b32 v36, s34\ns_or_b32 s34, s43, s53\nv_mov_b32 v37, s34")
    a("s_waitcnt vmcnt(0)")
    a("s_mov_b64 exec, 1\nglobal_store_dword v36, v37, s[24:25] sc1")
    exec_all()
    a("L_nofin:")
    a(f"v_min_u32 v11, 19, v0\nv_lshlrev_b32 v11, 5, v11\nv_add_u32 v11, {FL2}, v11")
    poll_head("L_wl")
    a(f"ds_read_b64 v[8:9], v10 offset:{LML}")
    a("s_waitcnt lgkmcnt(0)\nv_cmp_eq_u32 vcc, -1, v9")
    poll_tail("L_wl", 4)
    poll_head("L_f2")
    a("global_load_dword v8, v11, s[24:25] sc1\ns_waitcnt vmcnt(0)\nv_xor_b32 v8, s43, v8\nv_cmp_lt_u32 vcc, 1, v8")
    poll_tail("L_f2", 8)
    a(f"v_cmp_ne_u32 vcc, 0, v8\ns_lshl1_add_u32 s34, vcc_lo, s53\nv_mov_b32 v8, s34\nds_write_b32 v10, v8 offset:{LCH}")
    stamp(6)
    a("s_sub_u32 s42, s30, 20")
    if ntrg:
        a(f"s_lshl_b32 s35, s42, 7\ns_add_u32 s35, s35, {TRG}\nv_mov_b32 v11, s35")
        poll_head("L_tg")
        a(f"global_load_dword v8, v11, s[24:25] sc1\ns_waitcnt vmcnt(0)\nv_cmp_gt_i32 vcc, {ntrg-1}, v8")
        poll_tail("L_tg", slt)
    stamp(7)
    finish(False)

    a("L_w9:")
    a(f"s_lshl3_add_u32 s44, s29, s28\ns_lshl_b32 s44, s44, 7\ns_and_b32 s45, s30, 3\ns_lshl2_add_u32 s44, s45, s44\ns_add_u32 s44, s44, {FLG}")
    a("s_load_dword s40, s[24:25], 0\ns_load_dword s46, s[24:25], s44")
    a("s_getreg_b32 s43, hwreg(HW_REG_XCC_ID, 0, 4)")
    a("s_waitcnt lgkmcnt(0)")
    make_tag()
    a("s_and_b32 s45, s40, 0xfffffff0\ns_or_b32 s43, s43, s45\ns_sub_u32 s46, s43, s46")
    a("s_waitcnt vmcnt(0)")
    if "noflag" not in abl:
        if vflag:
            a("v_mov_b32 v36, s44\nv_mov_b32 v37, s43\ns_mov_b64 exec, 1\nglobal_store_dword v36, v37, s[24:25] sc1\ns_mov_b64 exec, -1")
        else:
            a("s_atomic_add s46, s[24:25], s44 glc")
    stamp(1)
    if prefetch:
        a("s_getpc_b64 s[34:35]\nL_pc:\ns_sub_u32 s34, s34, L_pc-L_start\ns_subb_u32 s35, s35, 0")
        a("s_lshl_b32 s36, s30, 10\nv_add_u32 v36, s36, v1")
        a("v_cmp_gt_u32 vcc, L_code_end-L_start-15, v36\ns_and_saveexec_b64 s[36:37], vcc\ns_cbranch_execz L_nopf")
        a("global_load_dwordx4 v[40:43], v36, s[34:35]")
        a("L_nopf:")
        exec_all()
    a("v_lshrrev_b32 v14, 1, v3")
    a(f"v_lshlrev_b32 v12, 7, v0\nv_add_u32 v12, {FLG}, v12")
    a(f"s_lshl_b32 s34, s27, 10\ns_add_u32 s34, s34, {ML}\nv_add_u32 v13, s34, v1\ns_lshl_b32 s35, s28, 7\ns_add_u32 s34, s34, s35\nv_add_u32 v15, s34, v1")
    a("v_mov_b32 v10, s40\nv_mov_b32 v11, s40\nv_mov_b32 v21, 0")
    poll_head("L_lf")
    a(f"ds_read_b32 v8, v21 offset:{LQF}\ns_waitcnt lgkmcnt(0)\nv_cmp_eq_u32 vcc, -1, v8")
    poll_tail("L_lf", 8)
    if "noflag" in abl:
        a("s_mov_b32 s47, 1")
    else:
        poll_head("L_pf")
        a("global_load_dwordx4 v[16:19], v12, s[24:25] sc1\ns_waitcnt vmcnt(0)")
        for k in range(4):
            a(f"v_xor_b32 v{16+k}, s43, v{16+k}")
        a("v_or3_b32 v16, v16, v17, v18\nv_or_b32 v16, v16, v19\nv_cmp_lt_u32 vcc, 15, v16")
        poll_tail("L_pf", 16)
        a("v_cmp_ne_u32 vcc, 0, v16\ns_lshl_b32 s34, s29, 3\ns_lshr_b64 s[44:45], vcc, s34\ns_and_b32 s44, s44, 0xff\ns_cselect_b32 s47, 0, 1")
    if not local:
        a("s_mov_b32 s47, 0")
    stamp(3)
    poll_head("L_pl")
    a(f"ds_read_b64 v[8:9], v14 offset:{LMW}\ns_waitcnt lgkmcnt(0)")
    a("v_max_u32 v20, v8, v9\nv_cmp_eq_u32 vcc, -1, v20")
    poll_tail("L_pl", 2)
    if "noml" in abl:
        a("s_branch L_pm_ok")
    a("s_mov_b64 exec, 0xff\ns_cmp_eq_u32 s47, 1\ns_cbranch_scc1 L_ml_near")
    a("global_store_dwordx4 v15, v[8:11], s[24:25] sc1\ns_branch L_ml_sent")
    a("L_ml_near:")
    a("global_store_dwordx4 v15, v[8:11], s[24:25]")
    a("L_ml_sent:")
    exec_all()
    stamp(5)
    poll_head("L_pm")
    a("global_load_dwordx4 v[16:19], v13, s[24:25] sc1\ns_waitcnt vmcnt(0)")
    a("v_cmp_ne_u32 vcc, s40, v18")
    poll_tail("L_pm", 1)
    a("v_mov_b32 v10, v16")
    red8("v_max_f32", (10,))
    red_hi("v_max_f32", (10,))
    a("v_readlane_b32 s34, v10, 63")
    a(f"v_subrev_f32 v8, s34, v16\nv_mul_f32 v8, {LOG2E}, v8\nv_exp_f32 v8, v8\nv_mul_f32 v9, v8, v17")
    red8("v_add_f32", (9,))
    red_hi("v_add_f32", (9,))
    a(f"v_rcp_f32 v9, v9\nv_mov_b32 v8, s34\nv_mov_b32 v10, s40\nv_mov_b32 v11, s47")
    a(f"s_lshl_b64 exec, 1, 63\nds_write_b128 v21, v[8:11] offset:{LML}")
    exec_all()
    stamp(4)
    a("L_helper_done:")
    finish(False)

    a("L_stream:")
    a.vm = vm_stream
    a("s_add_u32 s8, s8, s34\ns_addc_u32 s9, s9, 0")
    a("s_barrier")
    stamp(1)
    loads_until(d)
    masks()
    role_vcc()
    loads_until(kb)
    stamp(2)
    a("v_mov_b32 v38, 0")
    poll_head("L_lq")
    a(f"ds_read_b32 v36, v38 offset:{LQF}")
    for j in range(3):
        a(f"ds_read_b128 v[{ACC+4*j}:{ACC+4*j+3}], v3 offset:{LQ+128*j}")
    a("s_waitcnt lgkmcnt(0)")
    a("v_cmp_eq_u32 vcc, -1, v36")
    poll_tail("L_lq", 2)
    role_vcc()
    stamp(3)
    for t in range(8):
        while 3 * t + 2 > landed[0]:
            assert cur[0] < 24 + 3 * t
            loads_until(cur[0] + 1)
        a(f"v_mov_b32 v{S+t}, 0")
        for k in range(12):
            a(f"v_dot2c_f32_bf16 v{S+t}, v{KV+12*t+k}, v{ACC+k}")
        if t < 7:
            assert cur[0] < 24 + 3 * (t + 1)
            loads_until(cur[0] + 1)
    work = []
    for ctl in ("quad_perm:[1,0,3,2]", "quad_perm:[2,3,0,1]", "row_half_mirror"):
        work.append((-1, "\n".join(f"v_add_f32_dpp v{r}, v{r}, v{r} {ctl} {DM}" for r in range(S, S + 8))))
    work.append((-1, "\n".join(f"v_cvt_pk_bf16_f32 v{S+t}, 0, v{S+t}" for t in range(8))))
    work.append((-1, "\n".join(f"v_mul_f32 v{S+t}, {SCALE}, v{S+t}" for t in range(8))))
    work.append((-1, "\n".join(f"v_cvt_pk_bf16_f32 v{S+t}, 0, v{S+t}" for t in range(8))))
    work.append((-1, f"v_max3_f32 v36, v{S}, v{S+1}, v{S+2}\nv_max3_f32 v36, v36, v{S+3}, v{S+4}\nv_max3_f32 v36, v36, v{S+5}, v{S+6}\nv_max_f32 v36, v36, v{S+7}\n"
                 + "\n".join(f"v_max_f32_dpp v36, v36, v36 {c}" for c in HI) + "\nv_readlane_b32 s34, v36, 63"))
    for t in range(8):
        work.append((-1, f"v_subrev_f32 v{ACC+t}, s34, v{S+t}\nv_mul_f32 v{ACC+t}, {LOG2E}, v{ACC+t}\nv_exp_f32 v{ACC+t}, v{ACC+t}"))
    work.append((-1, f"s_lshl_b32 s35, s26, 3\nv_mov_b32 v38, s35\nv_add_f32 v37, v{ACC}, v{ACC+1}\n" + "\n".join(f"v_add_f32 v37, v37, v{ACC+t}" for t in range(2, 8))
                 + "\n" + "\n".join(f"v_add_f32_dpp v37, v37, v37 {c}" for c in HI)
                 + f"\ns_lshl_b64 exec, 1, 63\nds_write_b64 v38, v[36:37] offset:{LMW}\ns_mov_b64 exec, -1"))
    run(work, 3 * chunk)
    stamp(4)
    if ntrg and "now" not in abl and "noffnw" not in abl:
        hooks[24 + jt] = (f"s_lshl_b32 s34, s26, 8\ns_or_b32 s34, s34, s30\ns_cmp_lt_u32 s34, 6\ns_cbranch_scc0 L_nosig\n"
                          f"s_lshl_b32 s34, s34, 7\ns_add_u32 s34, s34, {TRG}\ns_mov_b32 s52, 1\ns_atomic_add s52, s[24:25], s34 glc\nL_nosig:")
        assert jt >= jb
        assert cur[0] <= 24 + jt
    loads_until(24 + jb)
    stamp(5)
    a("v_mov_b32 v38, 0")
    poll_head("L_lm")
    a(f"ds_read_b128 v[{WR}:{WR+3}], v38 offset:{LML}")
    a("s_waitcnt lgkmcnt(0)" if jt >= jb else "s_waitcnt lgkmcnt(0)")
    a(f"v_max_u32 v36, v{WR+1}, v{WR+3}\nv_cmp_eq_u32 vcc, -1, v36")
    poll_tail("L_lm", 2)
    role_vcc()
    stamp(6)
    a(f"v_readfirstlane_b32 s45, v{WR+3}\nv_readfirstlane_b32 s40, v{WR+2}")
    work = []
    for t in range(8):
        work.append((-1, f"v_sub_f32 v{S+t}, v{S+t}, v{WR}\nv_mul_f32 v{S+t}, {LOG2E}, v{S+t}\nv_exp_f32 v{S+t}, v{S+t}"))
    for t in range(8):
        work.append((-1, f"v_mul_f32 v{S+t}, v{S+t}, v{WR+1}\nv_cvt_pk_bf16_f32 v{S+t}, v{S+t}, v{S+t}"))
    for t in range(8):
        A = A0 if t % 2 == 0 else A1
        txt = "\n".join(f"v_and_b32 v{A+r}, v{4+r}, v{S+t}" for r in range(4))
        for j in range(3):
            acc = ACC + 4 * j
            B = KV + 12 * t + 4 * j
            txt += f"\nv_mfma_f32_16x16x32_bf16 v[{acc}:{acc+3}], v[{A}:{A+3}], v[{B}:{B+3}], " + ("0" if t == 0 else f"v[{acc}:{acc+3}]")
        work.append((24 + 3 * t + 2, txt))
    rest = run(work, chunk)
    loads_until(48)
    if hooks:
        a(hooks.popitem()[1])
    pdone = 8 - len(rest)
    assert 5 <= pdone <= 7, pdone
    stamp(7)
    a(f"s_mul_i32 s34, s26, 768\ns_add_u32 s34, s34, {LPV}\nv_and_b32 v1, 15, v0\nv_lshlrev_b32 v1, 5, v1\nv_and_b32 v39, 16, v0\nv_add3_u32 v1, v1, v39, s34\nv_lshrrev_b32 v39, 5, v0\nv_lshl_add_u32 v1, v39, 3, v1")
    a(f"s_lshl_b32 s34, s26, 8\ns_add_u32 s35, s34, {LPV}\nv_lshl_add_u32 v38, v0, 2, s35")
    a(f"s_mul_i32 s35, s27, 6144\ns_lshl_b32 s34, s26, 11\ns_add_u32 s35, s35, s34\ns_add_u32 s35, s35, {OP}")
    a("s_cmp_lt_u32 s26, 2\ns_cselect_b32 s34, 2, 1\ns_add_u32 s36, s34, 2\ns_lshl_b32 s46, s28, s36\ns_add_u32 s35, s35, s46\ns_add_u32 s36, s34, 5")
    a("v_lshrrev_b32 v37, s34, v0\nv_lshlrev_b32 v39, s34, v37\nv_sub_u32 v39, v0, v39\nv_lshlrev_b32 v37, s36, v37\nv_lshl_add_u32 v37, v39, 2, v37\nv_add_u32 v37, s35, v37")
    vm_common = list(a.vm)
    landed_common = landed[0]

    def pv_finish(sfx):
        a("v_mov_b32 v36, 1\nv_mov_b32 v39, 0")
        a("s_waitcnt lgkmcnt(0)")
        for t in range(pdone, 8):
            afrag(A0 if t % 2 == 0 else A1, S + t)
            for j in range(3):
                nn = 24 + 3 * t + j
                if nn > landed_common:
                    a.wait_vm(("kv", nn))
                mfma(ACC + 4 * j, A0 if t % 2 == 0 else A1, KV + 12 * t + 4 * j, False)
        stamp(8)
        for j in range(2):
            a(f"v_permlane32_swap_b32 v{ACC+4*j}, v{ACC+4*j+2}\nv_permlane32_swap_b32 v{ACC+4*j+1}, v{ACC+4*j+3}")
        for e in range(2):
            a(f"v_add_f32_dpp v{ACC+e}, v{ACC+2+e}, v{ACC+e} row_ror:8 row_mask:0xf bank_mask:0x3")
        for e in range(2):
            a(f"v_add_f32_dpp v{ACC+e}, v{ACC+4+e}, v{ACC+6+e} row_ror:8 row_mask:0xf bank_mask:0xc")
        a(f"v_permlane32_swap_b32 v{ACC+8}, v{ACC+10}\nv_permlane32_swap_b32 v{ACC+9}, v{ACC+11}")
        a(f"ds_write_b64 v1, v[{ACC}:{ACC+1}]")
        for e in range(2):
            a(f"v_add_f32_dpp v{ACC+8+e}, v{ACC+10+e}, v{ACC+8+e} row_ror:8 {DM}")
        a("s_mov_b32 exec_lo, 0x00ff00ff\ns_mov_b32 exec_hi, 0x00ff00ff")
        a(f"ds_write_b64 v1, v[{ACC+8}:{ACC+9}] offset:512")
        a(f"s_mov_b64 exec, 1\nds_add_u32 v39, v36 offset:{LCNT}")
        exec_all()
        a(f"s_cmp_lt_u32 s26, 3\ns_cbranch_scc0 L_pub_{sfx}")
        poll_head(f"L_pc_{sfx}")
        a(f"ds_read_b32 v36, v39 offset:{LCNT}")
        for k in range(4):
            a(f"ds_read2st64_b32 v[{72+2*k}:{73+2*k}], v38 offset0:{6*k} offset1:{6*k+3}")
        a("s_sub_u32 s41, s41, 1")
        a(f"s_cbranch_scc1 L_pub_{sfx}")
        lg(4)
        a(f"v_cmp_ne_u32 vcc, 7, v36\ns_cbranch_vccnz L_pc_{sfx}")
        a("s_bitcmp1_b32 s45, 0")
        sum8(72)
        a(f"s_cbranch_scc0 L_far_{sfx}")
        a("global_store_dword v37, v72, s[24:25]")
        a(f"L_pub_{sfx}:")
        stamp(9)

    def far_store(sfx):
        a(f"L_far_{sfx}:")
        a("global_store_dword v37, v72, s[24:25] sc1")
        a(f"s_branch L_pub_{sfx}")

    a("s_cmp_lt_u32 s2, 160\ns_cbranch_scc1 L_wo")
    a(f"s_cmp_lt_u32 s2, {160+NF}\ns_cbranch_scc1 L_ffn")
    pv_finish("none")
    finish()
    far_store("none")

    a("L_wo:")
    a.vm = list(vm_common)
    a("s_bfe_u32 s42, s30, 0x10001\ns_lshl1_add_u32 s42, s29, s42\ns_and_b32 s43, s30, 1\ns_lshl1_add_u32 s43, s28, s43")
    a(f"s_mul_i32 s34, s26, 6144\ns_add_u32 s34, s34, {LW}\nv_lshl_add_u32 v164, v0, 4, s34")
    a(f"s_lshr_b32 s34, s26, 2\ns_lshl1_add_u32 s34, s42, s34\ns_mul_i32 s34, s34, 6144\ns_add_u32 s34, s34, {OP}\ns_and_b32 s35, s26, 3\ns_lshl_b32 s35, s35, 9")
    a("s_lshl1_add_u32 s36, s35, s34\nv_lshl_add_u32 v160, v0, 4, s36\ns_add_u32 s36, s35, s34\ns_add_u32 s36, s36, 4096\nv_lshl_add_u32 v165, v0, 3, s36")
    a(f"s_lshl_b32 s34, s26, 9\ns_sub_u32 s34, {LWO-LPV}, s34\nv_add_u32 v161, s34, v1")
    a(f"v_lshlrev_b32 v162, 2, v0\ns_and_b32 s34, s42, 1\ns_mul_i32 s34, s34, 2560\ns_lshl_b32 s35, s43, 8\ns_add_u32 s34, s34, s35\ns_lshl_b32 s35, s29, 14\ns_add_u32 s34, s34, s35\ns_add_u32 s34, s34, {YP}\nv_add_u32 v163, s34, v162\nv_add_u32 v166, 8192, v163\nv_add_u32 v162, {LWO}, v162")
    pv_finish("wo")
    a("s_barrier")
    for i in range(6):
        a(f"ds_read_b128 v[{WR+4*i}:{WR+4*i+3}], v164 offset:{1024*i}")
    mpoll("L_po", ["global_load_dwordx4 v[88:91], v160, s[24:25] sc1", "global_load_dwordx2 v[92:93], v165, s[24:25] sc1"], range(88, 94), sl1)
    stamp(10)
    red8("v_add_f32", range(88, 94))
    for i in range(6):
        a(f"v_cvt_pk_bf16_f32 v{88+i}, v{88+i}, v{88+i}")
    a("s_waitcnt lgkmcnt(0)")
    gemv_chain([88 + i for i in range(6)], [WR + 4 * i for i in range(6)], ACC)
    a("s_cmp_eq_u32 s26, 0")
    eo_combine(ACC)
    a("s_mov_b32 exec_lo, 0x00ff00ff\ns_mov_b32 exec_hi, 0x00ff00ff")
    a(f"ds_write_b64 v161, v[{ACC}:{ACC+1}]")
    exec_all()
    a("s_waitcnt lgkmcnt(0)\ns_barrier")
    a("s_cbranch_scc0 L_fin")
    for k in range(4):
        a(f"ds_read2st64_b32 v[{72+2*k}:{73+2*k}], v162 offset0:{2*k} offset1:{2*k+1}")
    sum8(72)
    a("global_store_dword v163, v72, s[24:25] sc1\nglobal_store_dword v166, v72, s[24:25] sc1")
    stamp(11)
    a("L_fin:")
    finish()
    giveup("L_po")
    far_store("wo")

    a("L_ffn:")
    a.vm = list(vm_common)
    pv_finish("ffn")
    a("s_cmp_lt_u32 s26, 4\ns_cbranch_scc0 L_helper_done")
    X, CM, M0, OA, GA, GC, SA, F1W, F1R, GB, Z0, H, HF, ZR, FPA = 8, 11, 12, 14, 15, 16, 17, 18, 19, 20, 21, 23, 26, 27, 32
    G, W1 = 40, 80
    W2 = [120, 136, 152]
    AF, AC2, HD = G + 8, G + 28, G
    a("s_waitcnt lgkmcnt(0)")
    a("s_sub_u32 s42, s2, 160\ns_sub_u32 s43, s30, 20\ns_mul_i32 s34, s29, 6\ns_add_u32 s43, s43, s34")
    a("s_mul_i32 s34, s26, 491520\ns_lshl_b32 s35, s43, 6\ns_add_u32 s34, s34, s35\ns_add_u32 s16, s16, s34\ns_addc_u32 s17, s17, 0")
    a("s_mul_i32 s34, s43, 40960\ns_lshl_b32 s35, s26, 7\ns_add_u32 s34, s34, s35\ns_add_u32 s34, s34, 2560\ns_add_u32 s18, s18, s34\ns_addc_u32 s19, s19, 0")
    a("v_lshrrev_b32 v28, 4, v0\nv_and_b32 v29, 15, v0\nv_and_b32 v30, 3, v0\nv_and_b32 v31, 7, v0")
    a("v_and_b32 v32, 12, v0\nv_lshl_add_u32 v32, v32, 2, v28\nv_mul_u32_u24 v32, 3072, v32\nv_lshl_add_u32 v32, v30, 4, v32")
    a("v_and_b32 v33, 4, v0\nv_lshl_add_u32 v33, v33, 2, v28\nv_and_b32 v34, 8, v0\nv_add_u32 v33, v33, v34\nv_mul_u32_u24 v33, 3072, v33\nv_lshl_add_u32 v33, v30, 4, v33")
    a("v_mul_u32_u24 v34, 5120, v2\nv_add_u32 v34, v34, v3")
    a(f"s_mul_i32 s34, s26, 320\nv_lshl_add_u32 v35, v29, 2, v28\nv_lshl_add_u32 v35, v35, 1, s34\nv_lshl_add_u32 v{OA}, v31, 2, v28\nv_lshl_add_u32 v36, v{OA}, 1, s34")
    a(f"global_load_ushort v{X}, v35, s[4:5]\nglobal_load_ushort v{X+1}, v35, s[4:5] offset:128\nglobal_load_ushort v{X+2}, v36, s[4:5] offset:256")
    a(f"v_mov_b32 v{ZR}, 0")
    a("s_barrier")
    a(f"ds_read_b32 v39, v{ZR} offset:{LCH}")
    stamp(1)

    def w1load(t):
        row = (64 * (t // 4) + 4 * (t % 4)) * 3072
        a(f"s_add_u32 s46, s16, {row}\ns_addc_u32 s47, s17, 0")
        a(f"global_load_dwordx4 v[{W1+4*t}:{W1+4*t+3}], v{32 if t < 8 else 33}, s[46:47] {w1f}")

    def w2loads(sfx):
        for m in range(3):
            if m == 2:
                a(f"s_cmp_lt_u32 s26, 2\ns_cbranch_scc0 L_w2_{sfx}")
            for i in range(4):
                a(f"global_load_dwordx4 v[{W2[m]+4*i}:{W2[m]+4*i+3}], v34, s[18:19] offset:{1280*i-2560+512*m} nt")
        a(f"L_w2_{sfx}:")

    if rot:
        a("; the two workgroups that share w1 lines fetch them in opposite order")
        a("s_bitcmp1_b32 s43, 0\ns_cbranch_scc1 L_wodd")
    for t in range(5):
        w1load(t)
    w2loads("even")
    for t in range(5, 10):
        w1load(t)
    if rot:
        a("s_branch L_wdone")
        a("L_wodd:")
        for t in range(5, 10):
            w1load(t)
        w2loads("odd")
        for t in range(5):
            w1load(t)
        a("L_wdone:")
    stamp(2)
    a(f"s_lshl_b32 s35, s42, 6\nv_lshl_add_u32 v{OA}, v{OA}, 1, s35")
    a("s_waitcnt lgkmcnt(0)\nv_readfirstlane_b32 s45, v39")
    a(f"s_and_b32 s53, s45, 1\ns_lshl_b32 s53, s53, 13\ns_mul_i32 s34, s26, 640\ns_add_u32 s34, s34, s53\ns_add_u32 s35, s34, {YP}")
    a(f"v_lshlrev_b32 v{GA}, 15, v28\nv_lshl_add_u32 v{GA}, v29, 4, v{GA}\nv_add_u32 v{GA}, s35, v{GA}\nv_add_u32 v{GB}, 16384, v{GA}")
    a(f"s_add_u32 s35, s35, 512\nv_lshlrev_b32 v{GC}, 14, v2\nv_add3_u32 v{GC}, v{GC}, v3, s35")
    a(f"s_lshl_b32 s35, s26, 3\nv_mov_b32 v{SA}, s35")
    a(f"s_mul_i32 s35, s26, 768\nv_mul_u32_u24 v{F1W}, 192, v28\nv_lshl_add_u32 v{F1W}, v30, 5, v{F1W}\nv_add_u32 v{F1W}, s35, v{F1W}")
    a(f"v_mul_u32_u24 v{F1R}, 12, v3\nv_lshl_add_u32 v{F1R}, v2, 4, v{F1R}")
    a("v_and_b32 v36, 1, v28\nv_lshlrev_b32 v36, 2, v36\nv_and_b32 v37, 2, v28\nv_add_u32 v36, v36, v37\nv_lshl_add_u32 v36, v30, 3, v36")
    a(f"s_lshl_b32 s35, s42, 7\ns_add_u32 s35, s35, {FP}\nv_lshl_add_u32 v36, v36, 2, s35\ns_lshl_b32 s34, s26, 1\nv_bfe_u32 v37, v0, 2, 1\nv_add_u32 v37, s34, v37\ns_lshr_b32 s34, s45, 1")
    for m in range(3):
        a(f"v_lshrrev_b32 v38, v37, s34\nv_and_b32 v38, 1, v38\nv_lshl_add_u32 v38, v37, 1, v38\nv_lshl_add_u32 v{FPA+m}, v38, 13, v36")
        if m < 2:
            a("v_add_u32 v37, 8, v37")
    a(f"s_lshl_b32 s35, s42, 14\ns_add_u32 s35, s35, s53\ns_add_u32 s35, s35, {FP + 3072}\nv_lshl_add_u32 v{Z0}, v0, 4, s35")
    a(f"v_or_b32 v{M0}, v4, v6\nv_or_b32 v{M0+1}, v5, v7\nv_bfe_u32 v{CM}, v0, 3, 1\nv_add_u32 v{CM}, -1, v{CM}")
    a("s_mul_i32 s43, s26, 5\ns_sub_u32 s43, s42, s43\ns_and_b32 s44, s43, 1\ns_lshl_b32 s44, s44, 3\ns_lshl_b32 s44, 0x00ff00ff, s44")
    a("s_lshr_b32 s35, s43, 1\ns_cmp_eq_u32 s35, 1\ns_cselect_b64 s[50:51], -1, 0\ns_cmp_eq_u32 s35, 2\ns_cselect_b64 s[48:49], -1, 0")

    def yloads():
        for st in range(2):
            for k in range(4):
                r = G + 16 * st + 4 * k
                a(f"global_load_dwordx4 v[{r}:{r+3}], v{GA if k < 2 else GB}, s[24:25] offset:{2560*(k%2)+256*st} sc1")
        for k in range(2):
            a(f"global_load_dwordx4 v[{G+32+4*k}:{G+35+4*k}], v{GC}, s[24:25] offset:{2560*k} sc1")

    yloads()
    a("s_waitcnt vmcnt(10)")
    stamp(3)
    for k in range(3):
        a(f"v_lshlrev_b32 v{X+k}, 16, v{X+k}")
    for p in range(5):
        for e in range(2):
            a(f"v_swap_b32 v{W1+8*p+2+e}, v{W1+8*p+4+e}")
    a(f"s_mov_b32 s41, {cap}")
    a("s_branch L_py_in")
    a("L_py:")
    if sl2:
        a(f"s_sleep {sl2}")
    yloads()
    a("L_py_in:")
    poll_count("L_py")
    for st, w in ((0, 6), (1, 2)):
        a(f"s_waitcnt vmcnt({w})")
        for p, q in ((0, 4), (2, 6), (8, 12), (10, 14), (0, 8), (2, 10)):
            pk(G + 16 * st + p, G + 16 * st + q)
    a(f"v_pk_add_f32 v[36:37], v[{G}:{G+1}], v[{G+2}:{G+3}]\nv_pk_add_f32 v[38:39], v[{G+16}:{G+17}], v[{G+18}:{G+19}]")
    a("s_waitcnt vmcnt(0)")
    pk(G + 32, G + 36)
    pk(G + 34, G + 38)
    pk(36, G + 32)
    pk(38, G + 34)
    pk(36, 38)
    a("v_cmp_u_f32 vcc, v36, v37\ns_and_b64 exec, exec, vcc\ns_cbranch_scc1 L_py")
    a("L_py_ok:")
    exec_all()
    stamp(10)
    SET = (G, G + 16, G + 32)
    for r in SET:
        a(f"v_permlane32_swap_b32 v{r}, v{r+2}\nv_permlane32_swap_b32 v{r+1}, v{r+3}")
    for r in (SET[2], SET[0], SET[1]):
        pk(r, r + 2)
    for r in (SET[2], SET[0], SET[1]):
        a(f"v_permlane16_swap_b32 v{r}, v{r+1}")
    for r in (SET[2], SET[0], SET[1]):
        a(f"v_add_f32 v{r}, v{r}, v{r+1}")
    a(f"v_add_f32_dpp v{SET[2]}, v{SET[2]}, v{SET[2]} row_ror:8 {DM}")
    for r in SET:
        a(f"v_cvt_pk_bf16_f32 v{r}, 0, v{r}")
    for k, r in enumerate(SET):
        a(f"v_add_f32 v{H+k}, v{X+k}, v{r}")
    for k in range(3):
        a(f"v_cvt_pk_bf16_f32 v{H+k}, 0, v{H+k}")
    a(f"v_add_f32 v{G}, v{H}, v{H+1}\nv_mul_f32 v{G+1}, v{H}, v{H}\nv_and_b32 v36, v{CM}, v{H+2}\nv_fmac_f32 v{G+1}, v{H+1}, v{H+1}\nv_add_f32 v{G}, v{G}, v36\nv_fmac_f32 v{G+1}, v36, v36")
    fill = [f"v_cndmask_b32 v{HF}, v{H}, v{H+1}, s[50:51]", f"v_cndmask_b32 v{HF}, v{HF}, v{H+2}, s[48:49]",
            f"v_mov_b32_dpp v{H+2}, v{H+2} quad_perm:[2,3,0,1] row_mask:0xf bank_mask:0xc"]
    for ctl in (f"quad_perm:[1,0,3,2] {DM}", f"quad_perm:[2,3,0,1] {DM}", f"row_half_mirror {DM}") + HI:
        if fill:
            a(fill.pop(0))
        for r in (G, G + 1):
            a(f"v_add_f32_dpp v{r}, v{r}, v{r} {ctl}")
    a(f"s_lshl_b64 exec, 1, 63\nds_write_b64 v{SA}, v[{G}:{G+1}] offset:{LST}")
    exec_all()
    a("s_waitcnt lgkmcnt(0)\ns_barrier")
    a(f"ds_read_b128 v[{G}:{G+3}], v{ZR} offset:{LST}\nds_read_b128 v[{G+4}:{G+7}], v{ZR} offset:{LST+16}")
    a("s_waitcnt lgkmcnt(0)")
    pk(G, G + 2)
    pk(G + 4, G + 6)
    pk(G, G + 4)
    ln_scalars(G, G + 1, G + 2, G + 3)
    for k in range(3):
        a(f"v_sub_f32 v{G+4+k}, v{H+k}, v{G+2}")
    for k in range(3):
        a(f"v_cvt_pk_bf16_f32 v{G+4+k}, 0, v{G+4+k}")
    for k in range(3):
        a(f"v_mul_f32 v{G+4+k}, v{G+4+k}, v{G+3}")
    for k in range(3):
        a(f"v_cvt_pk_bf16_f32 v{G+4+k}, v{G+4+k}, v{G+4+k}")
    stamp(11)

    def quad_frag(p):
        for e in range(2):
            i = (2 * p + e) % 4
            for r in range(2):
                a(f"v_and_b32_dpp v{AF+4*p+2*e+r}, v{G+4+p//2}, v{M0+r} quad_perm:[{i},{i},{i},{i}] {DM}")

    quad_frag(0)
    for p in range(5):
        if p < 4:
            quad_frag(p + 1)
        for hf in range(2):
            mfma(AC2 + 4 * hf, AF + 4 * p, W1 + 8 * p + 4 * hf, p == 0)
    a("s_mov_b32 exec_lo, 0x00f0000f\ns_mov_b32 exec_hi, 0xf0000f00")
    a(f"ds_write_b128 v{F1W}, v[{AC2}:{AC2+3}] offset:{LF1}\nds_write_b128 v{F1W}, v[{AC2+4}:{AC2+7}] offset:{LF1+16}")
    exec_all()
    a("s_waitcnt lgkmcnt(0)\ns_barrier")
    for k in range(2):
        a(f"ds_read_b128 v[{HD+4*k}:{HD+4*k+3}], v{F1R} offset:{LF1+1536*k}")
    a("s_waitcnt lgkmcnt(0)")
    pk(HD, HD + 4)
    pk(HD + 2, HD + 6)
    red8("v_add_f32", range(HD, HD + 4))
    for i in range(4):
        a(f"v_max_f32 v{HD+i}, 0, v{HD+i}")
    for i in range(4):
        a(f"v_cvt_pk_bf16_f32 v{HD+i}, v{HD+i}, v{HD+i}")
    stamp(12)
    afrag(AF, HD)
    for i in range(4):
        if i < 3:
            afrag(AF + 4 * i + 4, HD + i + 1)
        mfma(AC2, AF + 4 * i, W2[0] + 4 * i, i == 0)
    for m in (1, 2):
        for i in range(4):
            mfma(AC2 + 4 * m, AF + 4 * i, W2[m] + 4 * i, i == 0)
    eo_combine(AC2)
    a("s_cmp_lt_u32 s26, 2")
    eo_combine(AC2 + 4)
    eo_combine(AC2 + 8)
    a("s_mov_b32 exec_lo, 0x00ff00ff\ns_mov_b32 exec_hi, 0x00ff00ff")
    a(f"global_store_dwordx2 v{FPA}, v[{AC2}:{AC2+1}], s[24:25] sc1")
    a(f"global_store_dwordx2 v{FPA+1}, v[{AC2+4}:{AC2+5}], s[24:25] sc1")
    a("s_cbranch_scc0 L_two")
    a(f"global_store_dwordx2 v{FPA+2}, v[{AC2+8}:{AC2+9}], s[24:25] sc1")
    a("L_two:")
    exec_all()
    stamp(13)
    a("s_cmp_lt_u32 s43, 5\ns_cbranch_scc0 L_notfinal")
    a(f"s_mov_b32 s41, {cap}")
    if ackwait:
        a("s_waitcnt vmcnt(0)")
    a("L_pz:")
    if sl3:
        a(f"s_sleep {sl3}")
    for k in range(6):
        a(f"global_load_dwordx4 v[{G+4*k}:{G+4*k+3}], v{Z0}, s[24:25] offset:{1024*k-3072} sc1")
    poll_count("L_pz")
    for k in range(1, 6):
        a(f"s_waitcnt vmcnt({5-k})")
        pk(G, G + 4 * k)
        pk(G + 2, G + 4 * k + 2)
    a(f"v_pk_add_f32 v[36:37], v[{G}:{G+1}], v[{G+2}:{G+3}]")
    a("v_cmp_u_f32 vcc, v36, v37\ns_and_b64 exec, exec, vcc\ns_cbranch_scc1 L_pz")
    a("L_pz_ok:")
    exec_all()
    transpose_reduce(G)
    a(f"v_add_f32_dpp v{G}, v{G}, v{G} row_ror:8 {DM}")
    a(f"v_cvt_pk_bf16_f32 v{G}, 0, v{G}\nv_add_f32 v{G}, v{HF}, v{G}\nv_cvt_pk_bf16_f32 v{G}, v{G}, v{G}")
    a("s_mov_b32 exec_lo, s44\ns_mov_b32 exec_hi, s44")
    a(f"global_store_short v{OA}, v{G}, s[20:21]")
    stamp(14)
    a("L_fin3:")
    finish()
    giveup("L_py")
    giveup("L_pz")
    a("L_notfinal:")
    a("s_cmp_eq_u32 s43, 47\ns_cbranch_scc0 L_fin3")
    a(f"v_mov_b32 v37, s40\ns_mov_b64 exec, 1\nglobal_store_dword v{ZR}, v37, s[24:25] offset:{EPOCH} sc1")
    finish()
    far_store("ffn")
    if diag:
        a("L_stamps:")
        a("s_waitcnt vmcnt(0)")
        stamp(15)
        a("s_sleep 127\ns_sleep 127\ns_sleep 127\ns_branch L_stamps_out")
        a("L_stamps_now:")
        stamp(15)
        a("L_stamps_out:")
        exec_all()
        a("s_waitcnt lgkmcnt(0)")
        a(f"s_mul_i32 s34, s2, 10\ns_add_u32 s34, s34, s26\ns_lshl_b32 s34, s34, 7\ns_add_u32 s34, s34, {STAMP}\nv_lshl_add_u32 v36, v0, 2, s34")
        for k in range(32):
            a(f"v_writelane_b32 v40, s{64+k}, {k}")
        a("s_mov_b32 exec_hi, 0")
        a("global_store_dword v36, v40, s[24:25]")
    a("L_end:")
    a("s_endpgm")
    a("L_code_end:")
    a.raw(f""".section .rodata,"a"
.p2align 6
.amdhsa_kernel {NAME}_kernel
  .amdhsa_next_free_vgpr 168
  .amdhsa_next_free_sgpr 96
  .amdhsa_accum_offset 168
  .amdhsa_group_segment_fixed_size 0
  .amdhsa_kernarg_size 88
  .amdhsa_user_sgpr_count 2
  .amdhsa_user_sgpr_kernarg_segment_ptr 1
  .amdhsa_system_sgpr_workgroup_id_x 1
  .amdhsa_float_denorm_mode_32 3
.end_amdhsa_kernel""")
    return a.text()


if __name__ == "__main__":
    import json
    out = sys.argv[1]
    kw = json.loads(sys.argv[2]) if len(sys.argv) > 2 else {}
    open(out, "w").write(gen(**kw))
```

```python
import sys
sys.path.insert(0, "exp")
from asmlib import Asm

NAME = "sequential_preLN__sliding_block_cached__dense_activation_relu__decode"
HEADER = open("cdna_kernels/" + NAME + ".s.ref").read().split("; Override launch")[0]

EPOCH, QP, ML, OP, FL, YP, FP, STAMP = 0, 0x2000, 0x42000, 0x4a000, 0x8a000, 0x8c000, 0xac000, 0x100000
assert YP % 16384 == 0 and FP % 16384 == 0 and FP + 20 * 16384 <= STAMP
LQ, LML, LQF, LCNT, LCH, LVI, LMW, LQP, LPV, LWO, LST, LF1, LW = 0, 512, 528, 532, 536, 540, 576, 1024, 4096, 12288, 14336, 14592, 20480
LDS_BYTES = LW + 49152
PVS = 1568
KV, WR, S, ACC, A0, A1 = 40, 136, 8, 16, 28, 32
LOG2E, SCALE, EPS, INV640 = "0x3fb8aa3b", "0x3d93cd3a", "0x3727c5ac", "0x3acccccd"
DM = "row_mask:0xf bank_mask:0xf"
HI = (f"row_ror:8 {DM}", "row_bcast:15 row_mask:0xa bank_mask:0xf", "row_bcast:31 row_mask:0xc bank_mask:0xf")
NF = 48
SS, SW, ST = 3072, 8 * 3072, 64 * 3072

OVERVIEW = """;
;"""


def gen(d=3, e0=2, kb=18, jb=17, fin=(6, 5), fast=1, fastn=(12, 42), k1=5, dw=10, hrot=0, nprobe=5, qtry=6, ltry=6,
        sl1=1, sl2=1, chunk=16, prefetch=True, local=True, near=True, cap=262144, diag=False, stamps=None, abl=()):
    a = Asm()

    def stamp(k):
        if diag and (stamps is None or k in stamps or k in (0, 15)):
            a(f"s_memrealtime s[{64+2*k}:{65+2*k}]")

    def lg(n):
        a(f"s_waitcnt lgkmcnt({0 if diag else n})")

    def finish(late=True):
        a(("s_branch L_stamps" if late else "s_branch L_stamps_now") if diag else "s_endpgm")

    def page():
        a.raw(".p2align 12")

    def masks():
        a("v_and_b32 v36, 1, v0\nv_mov_b32 v37, 0xffff\nv_lshlrev_b32 v36, 4, v36\nv_lshlrev_b32 v36, v36, v37\nv_bfe_u32 v37, v0, 1, 2")
        for r in range(4):
            a(f"v_cmp_eq_u32 vcc, {r}, v37")
            a(f"v_cndmask_b32 v{4+r}, 0, v36, vcc")

    def afrag(dst, pp):
        for r in range(4):
            a(f"v_and_b32 v{dst+r}, v{4+r}, v{pp}")

    def mfma(acc, A, B, first):
        c = "0" if first else f"v[{acc}:{acc+3}]"
        a(f"v_mfma_f32_16x16x32_bf16 v[{acc}:{acc+3}], v[{A}:{A+3}], v[{B}:{B+3}], {c}")

    def red8(op, regs):
        for ctl in ("quad_perm:[1,0,3,2]", "quad_perm:[2,3,0,1]", "row_half_mirror"):
            for r in regs:
                a(f"{op}_dpp v{r}, v{r}, v{r} {ctl} {DM}")

    def red_hi(op, regs):
        for ctl in HI:
            for r in regs:
                a(f"{op}_dpp v{r}, v{r}, v{r} {ctl}")

    def ln_scalars(sm, sq, mb, rinv):
        a(f"v_mul_f32 v{mb}, {INV640}, v{sm}")
        a(f"v_mul_f32 v{rinv}, {INV640}, v{sq}")
        a(f"v_fma_f32 v{rinv}, -v{mb}, v{mb}, v{rinv}")
        a(f"v_max_f32 v{rinv}, 0, v{rinv}")
        a(f"v_cvt_pk_bf16_f32 v{rinv}, 0, v{rinv}")
        a(f"v_add_f32 v{rinv}, {EPS}, v{rinv}")
        a(f"v_cvt_pk_bf16_f32 v{rinv}, 0, v{rinv}")
        a(f"v_sqrt_f32 v{rinv}, v{rinv}")
        a(f"v_cvt_pk_bf16_f32 v{mb}, 0, v{mb}")
        a(f"v_cvt_pk_bf16_f32 v{rinv}, 0, v{rinv}")
        a(f"v_rcp_f32 v{rinv}, v{rinv}")

    def exec_all():
        a("s_mov_b64 exec, -1")

    def exec_rep(m):
        a(f"s_mov_b32 exec_lo, {m}\ns_mov_b32 exec_hi, {m}")

    def pk(p, q):
        a(f"v_pk_add_f32 v[{p}:{p+1}], v[{p}:{p+1}], v[{q}:{q+1}]")

    def poll_head(lbl, n=None):
        a(f"s_mov_b32 s41, {cap if n is None else n}")
        a(f"{lbl}:")

    def poll_tail(lbl, sleep):
        a(f"s_cbranch_vccz {lbl}_ok")
        a(f"s_sleep {sleep}")
        a("s_sub_u32 s41, s41, 1")
        a(f"s_cbranch_scc0 {lbl}")
        a(f"{lbl}_ok:")

    def poll_count(lbl):
        a("s_sub_u32 s41, s41, 1")
        a(f"s_cbranch_scc1 {lbl}_giveup")

    def giveup(lbl):
        a(f"{lbl}_giveup:")
        a("s_waitcnt vmcnt(0)")
        a(f"s_branch {lbl}_ok")

    def eo_combine(acc):
        a(f"v_permlane32_swap_b32 v{acc}, v{acc+2}")
        a(f"v_permlane32_swap_b32 v{acc+1}, v{acc+3}")
        a(f"v_add_f32_dpp v{acc}, v{acc+2}, v{acc} row_ror:8 {DM}")
        a(f"v_add_f32_dpp v{acc+1}, v{acc+3}, v{acc+1} row_ror:8 {DM}")

    def make_tag():
        a("s_mul_i32 s40, s40, 0x9e3779b1\ns_add_u32 s40, s40, 0x7f4a7c15")
        a("s_getreg_b32 s43, hwreg(HW_REG_XCC_ID, 0, 4)\ns_and_b32 s44, s40, 0xfffffff0\ns_or_b32 s43, s43, s44")

    def role_vcc():
        if fast:
            a(f"s_sub_u32 s35, s2, 160\ns_cmp_lt_u32 s35, {NF}\ns_cselect_b64 vcc, -1, 0")

    def reset_and_flag(n):
        a("v_lshl_add_u32 v36, v0, 4, s34\nv_mov_b32 v12, -1\nv_mov_b32 v13, -1\nv_mov_b32 v14, -1\nv_mov_b32 v15, -1")
        for k in range(n):
            a(f"global_store_dwordx4 v36, v[12:15], s[24:25] offset:{1024*k-3072} sc1")
        a(f"s_lshl_b32 s35, s35, 5\ns_add_u32 s35, s35, {FL}\nv_mov_b32 v36, s35\nv_mov_b32 v37, s36")
        a("s_waitcnt vmcnt(0)")
        a("s_mov_b64 exec, 1\nglobal_store_dword v36, v37, s[24:25] sc1")
        exec_all()

    landed = [-1]
    cur = [0]
    W = [d if n < 48 - fin[0] else fin[1] for n in range(48)]

    def kvload(n):
        dn = W[n]
        if fast and fastn[0] <= n < fastn[1]:
            a(f"s_cbranch_vccnz L_fast{n}")
            a.wait_vm(("kv", n - dn))
            a(f"L_fast{n}:")
            dn += fast
        if n - dn > landed[0]:
            a.wait_vm(("kv", n - dn))
            landed[0] = n - dn
        base = 6 if n < 24 else 8
        m = n % 24
        r = KV + 4 * m
        a(f"global_load_dwordx4 v[{r}:{r+3}], v1, s[{base}:{base+1}] offset:{128*(m%3)} nt", ("kv", n))
        if m % 3 == 2 and m < 23:
            if hrot:
                a(f"s_cmp_eq_u32 s31, {7 - m // 3}\ns_cselect_b64 s[38:39], s[54:55], s[56:57]\ns_add_u32 s{base}, s{base}, s38\ns_addc_u32 s{base+1}, s{base+1}, s39")
            else:
                a(f"s_add_u32 s{base}, s{base}, s37\ns_addc_u32 s{base+1}, s{base+1}, 0")
        if n == 47 and k1 < 8:
            a(f"s_mov_b64 exec, 1\nv_mov_b32 v36, 1\nds_add_u32 v38, v36 offset:{LVI}\ns_mov_b64 exec, -1")

    def loads_until(n):
        while cur[0] < n:
            kvload(cur[0])
            cur[0] += 1

    def run(work, lines):
        k = 0
        while k < len(work):
            cnt = 0
            while k < len(work) and work[k][0] <= landed[0] and (cnt < lines or cur[0] >= 48):
                a(work[k][1])
                cnt += work[k][1].count("\n") + 1
                k += 1
            if k < len(work):
                if cur[0] >= 48:
                    return work[k:]
                loads_until(cur[0] + 1)
        return []

    a.raw(HEADER.rstrip())
    a.raw(f"; @launch grid=(256,1,1) block=(640,1,1) lds={LDS_BYTES}")
    a.raw(OVERVIEW)
    a.raw('.amdgcn_target "amdgcn-amd-amdhsa--gfx950"\n.text')
    a.raw(".p2align 12\n.fill 832, 4, 0xbf810000")
    a.raw(f".globl {NAME}_kernel\n.p2align 8\n.type {NAME}_kernel,@function\n{NAME}_kernel:")
    a("L_start:")
    stamp(0)
    a("s_load_dwordx16 s[4:19], s[0:1], 0")
    a("s_load_dwordx2 s[20:21], s[0:1], 64")
    a("s_load_dwordx2 s[24:25], s[0:1], 80")
    a("s_cmp_ge_u32 s2, 256\ns_cbranch_scc1 L_end")
    a("v_lshrrev_b32 v1, 6, v0")
    a("v_and_b32 v0, 63, v0")
    a("v_readfirstlane_b32 s26, v1")
    a("s_and_b32 s29, s2, 7\ns_lshr_b32 s30, s2, 3\ns_and_b32 s27, s30, 3\ns_lshl2_add_u32 s27, s29, s27\ns_lshr_b32 s28, s30, 2")
    a("v_lshrrev_b32 v2, 3, v0\nv_and_b32 v3, 7, v0\nv_lshlrev_b32 v3, 4, v3")
    a("s_cmp_lt_u32 s26, 8\ns_cbranch_scc0 L_help")
    a("v_mul_u32_u24 v1, 384, v2\nv_add_u32 v1, v1, v3")
    a(f"s_mul_i32 s34, s27, 12582912\ns_mul_i32 s35, s28, {SS}\ns_add_u32 s34, s34, s35\ns_mul_i32 s35, s26, {SW}\ns_add_u32 s34, s34, s35\ns_add_u32 s34, s34, 11010048\ns_mov_b32 s37, {ST}")
    if hrot:
        a(f"s_mul_i32 s31, s27, {hrot}\ns_and_b32 s31, s31, 7\ns_mul_i32 s35, s31, {ST}\ns_add_u32 s34, s34, s35\ns_mov_b32 s54, {-7*ST}\ns_mov_b32 s55, -1\ns_mov_b32 s56, {ST}\ns_mov_b32 s57, 0")
    a("s_waitcnt lgkmcnt(0)")
    a("s_add_u32 s6, s6, s34\ns_addc_u32 s7, s7, 0")
    loads_until(e0)
    vm_stream = list(a.vm)
    a("s_branch L_stream")

    a("L_help:")
    a("s_setprio 3")
    a("s_cmp_eq_u32 s26, 8\ns_cbranch_scc1 L_w8")
    a(f"v_mov_b32 v8, -1\nv_mov_b32 v9, -1\nv_and_b32 v15, 15, v0\nv_lshlrev_b32 v14, 3, v15\nds_write_b64 v14, v[8:9] offset:{LML}")
    a("s_waitcnt lgkmcnt(0)")
    a("s_barrier")
    a("s_branch L_w9")

    a("L_w8:")
    a.vm = []
    a("s_mov_b32 s34, 122880\ns_mul_i32 s35, s27, 384\ns_mul_i32 s36, s28, 983040\ns_add_u32 s35, s35, s36\ns_mul_i32 s36, s28, 160\ns_movk_i32 s37, 12288")
    a("v_mad_u32_u24 v1, v2, s34, v3")
    a("v_lshlrev_b32 v36, 4, v0\nv_lshlrev_b32 v37, 2, v0\nv_mad_u32_u24 v38, v2, 20, s36")
    a("s_waitcnt lgkmcnt(0)")
    a(f"s_load_dword s40, s[24:25], {EPOCH}")
    a("global_load_dwordx4 v[8:11], v36, s[4:5]", "x")
    a("global_load_dword v12, v37, s[4:5] offset:1024", "x")
    a("global_load_dwordx4 v[160:163], v38, s[4:5]", "x")
    a("global_load_dword v164, v38, s[4:5] offset:16", "x")
    a("s_add_u32 s10, s10, s35\ns_addc_u32 s11, s11, 0")
    for t in range(10):
        for j in range(3):
            r = KV + 12 * t + 4 * j
            a(f"global_load_dwordx4 v[{r}:{r+3}], v1, s[10:11] offset:{128*j} nt", ("wq", t))
        if t < 9:
            a("s_add_u32 s10, s10, s37\ns_addc_u32 s11, s11, 0")
    a("s_barrier")
    stamp(1)
    masks()
    a(f"v_lshrrev_b32 v1, 5, v0\nv_mul_u32_u24 v1, 768, v1\nv_lshl_add_u32 v1, v3, 1, v1\nv_and_b32 v39, 16, v0\nv_add_u32 v1, v1, v39")
    a("v_mov_b32 v13, 0\nv_mov_b32 v14, 0\ns_mov_b32 s34, 0x3f803f80")
    a.wait_vm("x")
    for k in range(5):
        a(f"v_dot2c_f32_bf16 v13, s34, v{8+k}")
        a(f"v_dot2c_f32_bf16 v14, v{8+k}, v{8+k}")
    red8("v_add_f32", (13, 14))
    red_hi("v_add_f32", (13, 14))
    a("v_readlane_b32 s34, v13, 63\nv_readlane_b32 s35, v14, 63")
    a("v_mov_b32 v13, s34\nv_mov_b32 v14, s35")
    ln_scalars(13, 14, 13, 14)
    for k in range(5):
        a(f"v_lshlrev_b32 v8, 16, v{160+k}\nv_and_b32 v9, 0xffff0000, v{160+k}")
        a("v_sub_f32 v8, v8, v13\nv_sub_f32 v9, v9, v13")
        a("v_cvt_pk_bf16_f32 v8, 0, v8\nv_cvt_pk_bf16_f32 v9, 0, v9")
        a("v_mul_f32 v8, v8, v14\nv_mul_f32 v9, v9, v14")
        a("v_cvt_pk_bf16_f32 v8, v8, v8\nv_cvt_pk_bf16_f32 v9, v9, v9")
        afrag(A0, 8)
        afrag(A1, 9)
        a.wait_vm(("wq", 2 * k + 1))
        for h, A in ((0, A0), (1, A1)):
            t = 2 * k + h
            for j in range(3):
                mfma(ACC + 4 * j, A, KV + 12 * t + 4 * j, t == 0)
    a("s_waitcnt lgkmcnt(0)")
    make_tag()
    a(f"s_lshl_b32 s34, s27, 13\ns_add_u32 s34, s34, {QP + 4096}\ns_lshl_b32 s35, s28, 10\ns_add_u32 s35, s35, s34\ns_sub_u32 s35, s35, 4096")
    a("v_lshl_add_u32 v8, v0, 4, s35\nv_lshl_add_u32 v9, v0, 4, s34\nv_lshlrev_b32 v10, 2, v0")
    a("s_mov_b32 exec_lo, 0x00ff00ff\ns_mov_b32 exec_hi, 0xff00ff00")
    for j in range(3):
        a(f"ds_write_b128 v1, v[{ACC+4*j}:{ACC+4*j+3}] offset:{LQP+256*j}")
    exec_all()
    a("s_waitcnt lgkmcnt(0)")
    for j in range(3):
        a(f"ds_read2st64_b32 v[{ACC+2*j}:{ACC+2*j+1}], v10 offset0:{LQP//256+j} offset1:{LQP//256+3+j}")
    a("v_mov_b32 v39, s43")
    a("s_waitcnt lgkmcnt(0)")
    for j in range(3):
        a(f"v_add_f32 v{36+j}, v{ACC+2*j}, v{ACC+2*j+1}")
    a("global_store_dwordx4 v8, v[36:39], s[24:25]" + ("" if local else " sc1"))
    stamp(3)
    poll_head("L_pq")
    for s in range(8):
        a(f"global_load_dwordx4 v[{KV+4*s}:{KV+4*s+3}], v9, s[24:25] offset:{1024*s-4096} sc1")
    a(f"s_cmp_eq_u32 s41, {cap-qtry}\ns_cbranch_scc0 L_pq_wait")
    a("global_store_dwordx4 v8, v[36:39], s[24:25] sc1")
    a("L_pq_wait:")
    a("s_waitcnt vmcnt(0)")
    T = [KV + 4 * s + 3 for s in range(8)]
    for op, r in (("min", 11), ("max", 12)):
        a(f"v_{op}3_u32 v{r}, v{T[0]}, v{T[1]}, v{T[2]}\nv_{op}3_u32 v{r}, v{r}, v{T[3]}, v{T[4]}\nv_{op}3_u32 v{r}, v{r}, v{T[5]}, v{T[6]}\nv_{op}_u32 v{r}, v{r}, v{T[7]}")
    a("v_xor_b32 v11, s43, v11\nv_xor_b32 v12, s43, v12\nv_or_b32 v11, v11, v12\nv_cmp_lt_u32 vcc, 15, v11")
    poll_tail("L_pq", 1)
    a("v_cmp_ne_u32 vcc, 0, v11\ns_cbranch_vccz L_pq_done")
    a("global_store_dwordx4 v8, v[36:39], s[24:25] sc1")
    a("L_pq_done:")
    for s in range(1, 8):
        for j in range(3):
            a(f"v_add_f32 v{KV+j}, v{KV+j}, v{KV+4*s+j}")
    a(f"v_cvt_pk_bf16_f32 v{KV}, v{KV}, v{KV+1}\nv_cvt_pk_bf16_f32 v{KV+2}, v{KV+2}, v{KV+2}")
    a("v_lshlrev_b32 v10, 1, v0")
    a(f"ds_write_b16 v10, v{KV} offset:{LQ}\nds_write_b16_d16_hi v10, v{KV} offset:{LQ+128}\nds_write_b16 v10, v{KV+2} offset:{LQ+256}")
    a("s_waitcnt lgkmcnt(0)")
    a(f"v_mov_b32 v10, 0\nds_write_b32 v10, v10 offset:{LQF}")
    stamp(4)
    a("s_cmp_lt_u32 s2, 160\ns_cbranch_scc0 L_w8_rest")
    a(f"s_mov_b32 m0, {LW}")
    a("s_lshr_b32 s42, s27, 1\ns_and_b32 s43, s30, 1\ns_lshl1_add_u32 s43, s28, s43")
    a("s_mul_i32 s34, s42, 491520\ns_lshl_b32 s35, s43, 7\ns_add_u32 s34, s34, s35\ns_add_u32 s44, s12, s34\ns_addc_u32 s45, s13, 0")
    a("v_mul_u32_u24 v36, 1280, v2\nv_add_u32 v36, v36, v3\ns_mov_b32 s34, 0")
    poll_head("L_wt")
    a(f"ds_read_b64 v[8:9], v10 offset:{LML}\ns_waitcnt lgkmcnt(0)\nv_cmp_eq_u32 vcc, -1, v9")
    poll_tail("L_wt", 4)
    stamp(7)

    def wo_tiles(lbl, last, win):
        a(f"{lbl}:")
        for i in range(6):
            if win:
                a(f"s_waitcnt vmcnt({win-1})")
            a("global_load_lds_dwordx4 v36, s[44:45] nt")
            if i % 3 < 2:
                a(f"s_add_u32 m0, m0, 1024\ns_add_u32 s44, s44, {64*1280}\ns_addc_u32 s45, s45, 0")
            else:
                a(f"s_add_u32 m0, m0, 1024\ns_sub_u32 s44, s44, {120*1280}\ns_subb_u32 s45, s45, 0")
        a(f"s_add_u32 s34, s34, 1\ns_cmp_eq_u32 s34, 4\ns_cbranch_scc0 {lbl}_same")
        a(f"s_add_u32 s44, s44, {128*1280}\ns_addc_u32 s45, s45, 0")
        a(f"{lbl}_same:")
        a(f"s_cmp_lt_u32 s34, {last}\ns_cbranch_scc1 {lbl}")

    wo_tiles("L_w8_wo", k1, dw)
    if k1 < 8:
        a("; the rest follows the last V loads of this workgroup")
        poll_head("L_vi")
        a(f"ds_read_b32 v8, v10 offset:{LVI}\ns_waitcnt lgkmcnt(0)\nv_cmp_gt_i32 vcc, 7, v8")
        poll_tail("L_vi", 1)
        wo_tiles("L_w8_wo2", 8, 0)
    stamp(8)
    a("s_waitcnt vmcnt(0)")
    stamp(9)
    a("s_barrier")
    if diag:
        a("s_barrier")
    finish()

    def helpers_rest():
        a("L_w8_rest:")
        a(f"s_sub_u32 s42, s2, 160\ns_and_b32 s43, s40, -2\ns_cmp_lt_u32 s42, {NF}\ns_cbranch_scc1 L_w8_ffn")
        a(f"s_cmp_lt_u32 s42, {NF + 16}\ns_cbranch_scc0 L_helper_done")
        a(f"s_sub_u32 s35, s30, 26\ns_lshl1_add_u32 s35, s29, s35\ns_lshl_b32 s34, s35, 13\ns_add_u32 s34, s34, {YP + 3072}\ns_add_u32 s35, s35, 20\ns_mov_b32 s36, s43")
        reset_and_flag(5)
        finish(False)
        a("L_w8_ffn:")
        a("s_mov_b32 s53, 0\ns_waitcnt lgkmcnt(0)")
        if near:
            a("; The two halves of a 16 KiB block live on opposite sides of the chip. Time uncached loads of a few lines in")
            a(f"s_and_b32 s34, s42, 3\ns_mul_i32 s34, s34, {5*16384}\ns_add_u32 s34, s34, {FP + 6144}\ns_lshr_b32 s35, s42, 2\ns_lshl_b32 s35, s35, 7")
            for k in range(nprobe):
                a(f"s_add_u32 s36, s35, {384*k}\ns_and_b32 s36, s36, 2047\ns_add_u32 s36, s36, s34\ns_add_u32 s{54+2*k}, s36, {16384*k}\ns_add_u32 s{55+2*k}, s{54+2*k}, 8192")
            for k in range(2 * nprobe):
                a(f"s_load_dword s44, s[24:25], s{54+k} glc")
            a("s_mov_b32 s36, -1\ns_mov_b32 s37, -1")
            a("s_waitcnt lgkmcnt(0)\ns_memtime s[46:47]")
            for k in range(2 * nprobe):
                p, q = (46, 48) if k % 2 == 0 else (48, 46)
                a(f"s_waitcnt lgkmcnt(0)\ns_load_dword s44, s[24:25], s{54+k} glc")
                if k:
                    a(f"s_sub_u32 s45, s{p}, s{q}\ns_min_u32 s{36+(k-1)%2}, s{36+(k-1)%2}, s45")
                a(f"s_waitcnt lgkmcnt(0)\ns_memtime s[{q}:{q+1}]")
            a("s_waitcnt lgkmcnt(0)\ns_sub_u32 s45, s46, s48\ns_min_u32 s37, s37, s45")
            a("s_cmp_lt_u32 s37, s36\ns_cselect_b32 s53, 1, 0")
        stamp(5)
        a(f"v_mov_b32 v8, s53\nds_write_b32 v10, v8 offset:{LCH}")
        a("s_cmp_lt_u32 s42, 20\ns_cbranch_scc0 L_helper_done")
        a(f"s_lshl1_add_u32 s34, s42, s53\ns_lshl_b32 s34, s34, 13\ns_add_u32 s34, s34, {FP + 3072}\ns_mov_b32 s35, s42\ns_or_b32 s36, s43, s53")
        reset_and_flag(6)
        finish(False)

        a("L_w9:")
        a(f"s_load_dword s40, s[24:25], {EPOCH}")
        a("v_lshlrev_b32 v1, 4, v0")
        if prefetch:
            a("; one KiB of this kernel's code per workgroup is pulled into L2")
            a("s_getpc_b64 s[34:35]\nL_pc:\ns_sub_u32 s34, s34, L_pc-L_start\ns_subb_u32 s35, s35, 0")
            a("s_lshl_b32 s36, s30, 10\nv_add_u32 v36, s36, v1")
            a("v_cmp_gt_u32 vcc, L_code_end-L_start-15, v36\ns_and_saveexec_b64 s[36:37], vcc\ns_cbranch_execz L_nopf")
            a("global_load_dwordx4 v[40:43], v36, s[34:35]")
            a("L_nopf:")
            exec_all()
        a(f"s_lshr_b32 s34, s27, 1\ns_lshl_b32 s34, s34, 14\ns_add_u32 s34, s34, {QP + 12}\nv_lshl_add_u32 v12, v15, 10, s34")
        a(f"s_lshl_b32 s34, s27, 10\ns_add_u32 s34, s34, {ML}\nv_add_u32 v13, s34, v1\ns_lshl_b32 s35, s28, 7\ns_add_u32 s34, s34, s35\nv_add_u32 v15, s34, v1")
        a("v_lshrrev_b32 v14, 1, v3\nv_mov_b32 v21, 0")
        a("s_waitcnt lgkmcnt(0)")
        make_tag()
        a("v_mov_b32 v10, s40\nv_mov_b32 v11, s40")
        poll_head("L_lf")
        a(f"ds_read_b32 v8, v21 offset:{LQF}\ns_waitcnt lgkmcnt(0)\nv_cmp_eq_u32 vcc, -1, v8")
        poll_tail("L_lf", 8)
        poll_head("L_pf", ltry)
        a("global_load_dword v16, v12, s[24:25] sc1\ns_waitcnt vmcnt(0)\nv_cmp_ne_u32 vcc, s43, v16")
        poll_tail("L_pf", 8)
        a("s_cmp_eq_u64 vcc, 0\ns_cselect_b32 s47, " + ("1, 0" if local else "0, 0"))
        stamp(3)
        poll_head("L_pl")
        a(f"ds_read_b64 v[8:9], v14 offset:{LMW}\ns_waitcnt lgkmcnt(0)")
        a("v_max_u32 v20, v8, v9\nv_cmp_eq_u32 vcc, -1, v20")
        poll_tail("L_pl", 2)
        a("s_mov_b64 exec, 0xff\ns_cmp_eq_u32 s47, 1\ns_cbranch_scc1 L_ml_near")
        a("global_store_dwordx4 v15, v[8:11], s[24:25] sc1\ns_branch L_ml_sent")
        a("L_ml_near:")
        a("global_store_dwordx4 v15, v[8:11], s[24:25]")
        a("L_ml_sent:")
        exec_all()
        stamp(5)
        poll_head("L_pm")
        a("global_load_dwordx4 v[16:19], v13, s[24:25] sc1\ns_waitcnt vmcnt(0)")
        a("v_cmp_ne_u32 vcc, s40, v18")
        poll_tail("L_pm", 1)
        a("v_mov_b32 v10, v16")
        red8("v_max_f32", (10,))
        red_hi("v_max_f32", (10,))
        a("v_readlane_b32 s34, v10, 63")
        a(f"v_subrev_f32 v8, s34, v16\nv_mul_f32 v8, {LOG2E}, v8\nv_exp_f32 v8, v8\nv_mul_f32 v9, v8, v17")
        red8("v_add_f32", (9,))
        red_hi("v_add_f32", (9,))
        a("v_rcp_f32 v9, v9\nv_mov_b32 v8, s34\nv_mov_b32 v10, s40\nv_mov_b32 v11, s47")
        a(f"s_lshl_b64 exec, 1, 63\nds_write_b128 v21, v[8:11] offset:{LML}")
        exec_all()
        stamp(4)
        a("s_cmp_lt_u32 s2, 160\ns_cbranch_scc0 L_helper_done")
        a(f"s_lshl_b32 s34, s29, 6\ns_add_u32 s34, s34, {FL + 20*32}\nv_and_b32 v12, 1, v0\nv_lshl_add_u32 v12, v12, 5, s34\ns_and_b32 s43, s40, -2")
        poll_head("L_py9")
        a("global_load_dword v16, v12, s[24:25] sc1\ns_waitcnt vmcnt(0)\nv_cmp_ne_u32 vcc, s43, v16")
        poll_tail("L_py9", 8)
        a("L_helper_done:")
        finish(False)

    page()
    a("L_stream:")
    a.vm = vm_stream
    a("s_add_u32 s8, s8, s34\ns_addc_u32 s9, s9, 0")
    a("s_barrier")
    stamp(1)
    loads_until(d)
    masks()
    role_vcc()
    loads_until(kb)
    stamp(2)
    a("v_mov_b32 v38, 0")
    poll_head("L_lq")
    a(f"ds_read_b32 v36, v38 offset:{LQF}")
    for j in range(3):
        a(f"ds_read_b128 v[{ACC+4*j}:{ACC+4*j+3}], v3 offset:{LQ+128*j}")
    a("s_waitcnt lgkmcnt(0)")
    a("v_cmp_eq_u32 vcc, -1, v36")
    poll_tail("L_lq", 2)
    role_vcc()
    stamp(3)
    for t in range(8):
        while 3 * t + 2 > landed[0]:
            assert cur[0] < 24 + 3 * t
            loads_until(cur[0] + 1)
        a(f"v_mov_b32 v{S+t}, 0")
        for k in range(12):
            a(f"v_dot2c_f32_bf16 v{S+t}, v{KV+12*t+k}, v{ACC+k}")
        if t < 7:
            assert cur[0] < 24 + 3 * (t + 1)
            loads_until(cur[0] + 1)
    work = []
    for ctl in ("quad_perm:[1,0,3,2]", "quad_perm:[2,3,0,1]", "row_half_mirror"):
        work.append((-1, "\n".join(f"v_add_f32_dpp v{r}, v{r}, v{r} {ctl} {DM}" for r in range(S, S + 8))))
    work.append((-1, "\n".join(f"v_cvt_pk_bf16_f32 v{S+t}, 0, v{S+t}" for t in range(8))))
    work.append((-1, "\n".join(f"v_mul_f32 v{S+t}, {SCALE}, v{S+t}" for t in range(8))))
    work.append((-1, "\n".join(f"v_cvt_pk_bf16_f32 v{S+t}, 0, v{S+t}" for t in range(8))))
    work.append((-1, f"v_max3_f32 v36, v{S}, v{S+1}, v{S+2}\nv_max3_f32 v36, v36, v{S+3}, v{S+4}\nv_max3_f32 v36, v36, v{S+5}, v{S+6}\nv_max_f32 v36, v36, v{S+7}\n"
                 + "\n".join(f"v_max_f32_dpp v36, v36, v36 {c}" for c in HI) + "\nv_readlane_b32 s34, v36, 63"))
    for t in range(8):
        work.append((-1, f"v_subrev_f32 v{ACC+t}, s34, v{S+t}\nv_mul_f32 v{ACC+t}, {LOG2E}, v{ACC+t}\nv_exp_f32 v{ACC+t}, v{ACC+t}"))
    work.append((-1, f"s_lshl_b32 s35, s26, 3\nv_mov_b32 v38, s35\nv_add_f32 v37, v{ACC}, v{ACC+1}\n" + "\n".join(f"v_add_f32 v37, v37, v{ACC+t}" for t in range(2, 8))
                 + "\n" + "\n".join(f"v_add_f32_dpp v37, v37, v37 {c}" for c in HI)
                 + f"\ns_lshl_b64 exec, 1, 63\nds_write_b64 v38, v[36:37] offset:{LMW}\ns_mov_b64 exec, -1"))
    run(work, 3 * chunk)
    stamp(4)
    loads_until(24 + jb)
    stamp(5)
    a("v_mov_b32 v38, 0")
    poll_head("L_lm")
    a(f"ds_read_b128 v[{WR}:{WR+3}], v38 offset:{LML}")
    a("s_waitcnt lgkmcnt(0)")
    a(f"v_max_u32 v36, v{WR+1}, v{WR+3}\nv_cmp_eq_u32 vcc, -1, v36")
    poll_tail("L_lm", 2)
    role_vcc()
    stamp(6)
    a(f"v_readfirstlane_b32 s45, v{WR+3}\nv_readfirstlane_b32 s40, v{WR+2}")
    work = []
    for t in range(8):
        work.append((-1, f"v_sub_f32 v{S+t}, v{S+t}, v{WR}\nv_mul_f32 v{S+t}, {LOG2E}, v{S+t}\nv_exp_f32 v{S+t}, v{S+t}"))
    for t in range(8):
        work.append((-1, f"v_mul_f32 v{S+t}, v{S+t}, v{WR+1}\nv_cvt_pk_bf16_f32 v{S+t}, v{S+t}, v{S+t}"))
    for t in range(8):
        A = A0 if t % 2 == 0 else A1
        txt = "\n".join(f"v_and_b32 v{A+r}, v{4+r}, v{S+t}" for r in range(4))
        for j in range(3):
            acc = ACC + 4 * j
            B = KV + 12 * t + 4 * j
            txt += f"\nv_mfma_f32_16x16x32_bf16 v[{acc}:{acc+3}], v[{A}:{A+3}], v[{B}:{B+3}], " + ("0" if t == 0 else f"v[{acc}:{acc+3}]")
        work.append((24 + 3 * t + 2, txt))
    rest = run(work, chunk)
    loads_until(48)
    pdone = 8 - len(rest)
    assert 5 <= pdone <= 7, pdone
    stamp(7)
    a("v_and_b32 v70, 15, v0\nv_lshlrev_b32 v70, 5, v70\nv_and_b32 v39, 16, v0\nv_add_u32 v70, v70, v39\nv_lshrrev_b32 v39, 5, v0\nv_lshl_add_u32 v70, v39, 3, v70")
    a(f"s_lshr_b32 s34, s26, 1\ns_mul_i32 s34, s34, {PVS}\ns_and_b32 s35, s26, 1\ns_mul_i32 s35, s35, 768\ns_add_u32 s34, s34, s35\nv_add_u32 v1, s34, v70")
    a(f"v_and_b32 v38, 3, v0\nv_mul_u32_u24 v38, {PVS}, v38\nv_and_b32 v39, 60, v0\ns_lshl_b32 s34, s26, 6\nv_add3_u32 v38, v38, v39, s34")
    a(f"s_lshl_b32 s35, s27, 13\ns_lshl_b32 s34, s26, 11\ns_add_u32 s35, s35, s34\ns_lshl_b32 s34, s28, 4\ns_add_u32 s35, s35, s34\ns_add_u32 s35, s35, {OP}\nv_lshl_add_u32 v37, v39, 5, s35")
    a("v_mov_b32 v75, s40")
    vm_common = list(a.vm)
    landed_common = landed[0]

    def pv_finish(sfx):
        a("v_mov_b32 v36, 1\nv_mov_b32 v39, 0")
        a("s_waitcnt lgkmcnt(0)")
        for t in range(pdone, 8):
            afrag(A0 if t % 2 == 0 else A1, S + t)
            for j in range(3):
                nn = 24 + 3 * t + j
                if nn > landed_common:
                    a.wait_vm(("kv", nn))
                mfma(ACC + 4 * j, A0 if t % 2 == 0 else A1, KV + 12 * t + 4 * j, False)
        stamp(8)
        a("s_cmp_lt_u32 s26, 4")
        a(f"s_mov_b32 s41, {cap}")
        for j in range(2):
            a(f"v_permlane32_swap_b32 v{ACC+4*j}, v{ACC+4*j+2}\nv_permlane32_swap_b32 v{ACC+4*j+1}, v{ACC+4*j+3}")
        for e in range(2):
            a(f"v_add_f32_dpp v{ACC+e}, v{ACC+2+e}, v{ACC+e} row_ror:8 row_mask:0xf bank_mask:0x3")
        a(f"v_permlane32_swap_b32 v{ACC+8}, v{ACC+10}")
        for e in range(2):
            a(f"v_add_f32_dpp v{ACC+e}, v{ACC+4+e}, v{ACC+6+e} row_ror:8 row_mask:0xf bank_mask:0xc")
        a(f"v_permlane32_swap_b32 v{ACC+9}, v{ACC+11}")
        a(f"ds_write_b64 v1, v[{ACC}:{ACC+1}] offset:{LPV}")
        for e in range(2):
            a(f"v_add_f32_dpp v{ACC+8+e}, v{ACC+10+e}, v{ACC+8+e} row_ror:8 {DM}")
        exec_rep("0x00ff00ff")
        a(f"ds_write_b64 v1, v[{ACC+8}:{ACC+9}] offset:{LPV+512}")
        a(f"s_mov_b64 exec, 1\nds_add_u32 v39, v36 offset:{LCNT}")
        exec_all()
        a(f"s_cbranch_scc0 L_pub_{sfx}")
        a(f"L_pc_{sfx}:")
        a(f"ds_read_b32 v36, v39 offset:{LCNT}")
        for j in range(3):
            a(f"ds_read2st64_b32 v[{76+2*j}:{77+2*j}], v38 offset0:{LPV//256+j} offset1:{LPV//256+j+3}")
        a("s_sub_u32 s41, s41, 1")
        a(f"s_cbranch_scc1 L_pub_{sfx}")
        lg(3)
        a(f"v_cmp_ne_u32 vcc, 7, v36\ns_cbranch_vccnz L_pc_{sfx}")
        a("s_cmp_eq_u32 s45, 1")
        a("s_waitcnt lgkmcnt(0)")
        for j in range(3):
            a(f"v_add_f32 v{72+j}, v{76+2*j}, v{77+2*j}")
        for ctl in ("quad_perm:[1,0,3,2]", "quad_perm:[2,3,0,1]"):
            for j in range(3):
                a(f"v_add_f32_dpp v{72+j}, v{72+j}, v{72+j} {ctl} {DM}")
        exec_rep("0x11111111")
        a(f"s_cbranch_scc0 L_far_{sfx}")
        a("global_store_dwordx4 v37, v[72:75], s[24:25]")
        a(f"L_pub_{sfx}:")
        exec_all()
        stamp(9)

    def far_store(sfx):
        a(f"L_far_{sfx}:")
        a("global_store_dwordx4 v37, v[72:75], s[24:25] sc1")
        a(f"s_branch L_pub_{sfx}")

    a("s_cmp_lt_u32 s2, 160\ns_cbranch_scc1 L_wo")
    a(f"s_cmp_lt_u32 s2, {160+NF}\ns_cbranch_scc1 L_ffn")
    pv_finish("none")
    finish()
    far_store("none")

    page()
    a("L_wo:")
    a.vm = list(vm_common)
    a("s_lshr_b32 s42, s27, 1\ns_and_b32 s43, s30, 1\ns_lshl1_add_u32 s43, s28, s43")
    a(f"s_mul_i32 s34, s26, 6144\ns_add_u32 s34, s34, {LW}\nv_lshl_add_u32 v164, v0, 4, s34")
    a(f"s_lshl3_add_u32 s34, s42, s26\ns_lshl_b32 s34, s34, 11\ns_add_u32 s34, s34, {OP}\nv_lshl_add_u32 v160, v0, 4, s34")
    a("s_lshl_b32 s34, s26, 8\nv_add_u32 v161, s34, v70\nv_lshlrev_b32 v162, 2, v0")
    a(f"s_and_b32 s34, s42, 1\ns_mul_i32 s34, s34, 2560\ns_lshl_b32 s35, s43, 8\ns_add_u32 s34, s34, s35\ns_lshl_b32 s35, s29, 14\ns_add_u32 s34, s34, s35\ns_add_u32 s34, s34, {YP}\nv_add_u32 v163, s34, v162\nv_add_u32 v166, 8192, v163")
    pv_finish("wo")
    oloads = "global_load_dwordx4 v[88:91], v160, s[24:25] sc1\nglobal_load_dwordx4 v[92:95], v160, s[24:25] offset:1024 sc1"
    a(f"s_mov_b32 s41, {cap}")
    a(oloads)
    a("s_barrier")
    for i in range(6):
        a(f"ds_read_b128 v[{WR+4*i}:{WR+4*i+3}], v164 offset:{1024*i}")
    a("s_branch L_po_go")
    a("L_po:")
    if sl1:
        a(f"s_sleep {sl1}")
    a(oloads)
    a("L_po_go:")
    poll_count("L_po")
    a("s_waitcnt vmcnt(0)")
    a("v_cmp_ne_u32 vcc, s40, v91\nv_cmp_ne_u32 s[46:47], s40, v95\ns_or_b64 exec, vcc, s[46:47]\ns_cbranch_scc1 L_po")
    a("L_po_ok:")
    exec_all()
    stamp(10)
    OV = (88, 89, 90, 92, 93, 94)
    red8("v_add_f32", OV)
    for r in OV:
        a(f"v_cvt_pk_bf16_f32 v{r}, v{r}, v{r}")
    a("s_waitcnt lgkmcnt(0)")
    afrag(A0, OV[0])
    for i in range(6):
        if i < 5:
            afrag((A0, A1)[(i + 1) % 2], OV[i + 1])
        mfma(ACC, (A0, A1)[i % 2], WR + 4 * i, i == 0)
    a("s_cmp_eq_u32 s26, 0")
    eo_combine(ACC)
    exec_rep("0x00ff00ff")
    a(f"ds_write_b64 v161, v[{ACC}:{ACC+1}] offset:{LWO}")
    exec_all()
    a("s_waitcnt lgkmcnt(0)\ns_barrier")
    a("s_cbranch_scc0 L_fin")
    for k in range(4):
        a(f"ds_read2st64_b32 v[{72+2*k}:{73+2*k}], v162 offset0:{LWO//256+2*k} offset1:{LWO//256+2*k+1}")
    lg(2)
    pk(72, 74)
    lg(0)
    pk(76, 78)
    pk(72, 76)
    a("v_add_f32 v72, v72, v73")
    a("global_store_dword v163, v72, s[24:25] sc1\nglobal_store_dword v166, v72, s[24:25] sc1")
    stamp(11)
    a("L_fin:")
    finish()
    giveup("L_po")
    far_store("wo")
    helpers_rest()

    page()
    a("L_ffn:")
    a.vm = list(vm_common)
    pv_finish("ffn")
    a("s_cmp_lt_u32 s26, 4\ns_cbranch_scc0 L_helper_done")
    X, CM, M0, OA, GA, GC, SA, F1W, F1R, GB, Z0, H, HF, ZR, FPA = 8, 11, 12, 14, 15, 16, 17, 18, 19, 20, 21, 23, 26, 27, 32
    G, W1 = 40, 80
    W2 = [120, 136, 152]
    AF, AC2, HD = G + 8, G + 28, G
    a("s_sub_u32 s42, s2, 160\ns_sub_u32 s43, s30, 20\ns_mul_i32 s34, s29, 6\ns_add_u32 s43, s43, s34")
    a("s_mul_i32 s34, s26, 491520\ns_lshl_b32 s35, s43, 6\ns_add_u32 s34, s34, s35\ns_add_u32 s16, s16, s34\ns_addc_u32 s17, s17, 0")
    a("s_mul_i32 s34, s43, 40960\ns_lshl_b32 s35, s26, 7\ns_add_u32 s34, s34, s35\ns_add_u32 s34, s34, 2560\ns_add_u32 s18, s18, s34\ns_addc_u32 s19, s19, 0")
    a("v_lshrrev_b32 v28, 4, v0\nv_and_b32 v29, 15, v0\nv_and_b32 v30, 3, v0\nv_and_b32 v31, 7, v0")
    a("v_and_b32 v32, 12, v0\nv_lshl_add_u32 v32, v32, 2, v28\nv_mul_u32_u24 v32, 3072, v32\nv_lshl_add_u32 v32, v30, 4, v32")
    a("v_and_b32 v33, 4, v0\nv_lshl_add_u32 v33, v33, 2, v28\nv_and_b32 v34, 8, v0\nv_add_u32 v33, v33, v34\nv_mul_u32_u24 v33, 3072, v33\nv_lshl_add_u32 v33, v30, 4, v33")
    a("v_mul_u32_u24 v34, 5120, v2\nv_add_u32 v34, v34, v3")
    a(f"s_mul_i32 s34, s26, 320\nv_lshl_add_u32 v35, v29, 2, v28\nv_lshl_add_u32 v35, v35, 1, s34\nv_lshl_add_u32 v{OA}, v31, 2, v28\nv_lshl_add_u32 v36, v{OA}, 1, s34")
    a(f"global_load_ushort v{X}, v35, s[4:5]\nglobal_load_ushort v{X+1}, v35, s[4:5] offset:128\nglobal_load_ushort v{X+2}, v36, s[4:5] offset:256")
    a(f"v_mov_b32 v{ZR}, 0\nv_min_u32 v1, 35, v0\nv_lshlrev_b32 v1, 5, v1\nv_add_u32 v1, {FL}, v1\nglobal_load_dword v22, v1, s[24:25] sc1")
    a("s_barrier")
    a(f"ds_read_b32 v39, v{ZR} offset:{LCH}")
    stamp(1)

    def w1load(t):
        row = (64 * (t // 4) + 4 * (t % 4)) * 3072
        a(f"s_add_u32 s46, s16, {row}\ns_addc_u32 s47, s17, 0")
        a(f"global_load_dwordx4 v[{W1+4*t}:{W1+4*t+3}], v{32 if t < 8 else 33}, s[46:47]")

    def w2loads(sfx):
        for m in range(3):
            if m == 2:
                a(f"s_cmp_lt_u32 s26, 2\ns_cbranch_scc0 L_w2_{sfx}")
            for i in range(4):
                a(f"global_load_dwordx4 v[{W2[m]+4*i}:{W2[m]+4*i+3}], v34, s[18:19] offset:{1280*i-2560+512*m} nt")
        a(f"L_w2_{sfx}:")

    a("s_bitcmp1_b32 s43, 0\ns_cbranch_scc1 L_wodd")
    for t in range(5):
        w1load(t)
    w2loads("even")
    for t in range(5, 10):
        w1load(t)
    a("s_branch L_wdone")
    a("L_wodd:")
    for t in range(5, 10):
        w1load(t)
    w2loads("odd")
    for t in range(5):
        w1load(t)
    a("L_wdone:")
    stamp(2)
    a(f"s_lshl_b32 s35, s42, 6\nv_lshl_add_u32 v{OA}, v{OA}, 1, s35")
    a("s_waitcnt lgkmcnt(0)\nv_readfirstlane_b32 s53, v39")
    a(f"s_and_b32 s53, s53, 1\ns_lshl_b32 s53, s53, 13\ns_mul_i32 s34, s26, 640\ns_add_u32 s34, s34, s53\ns_add_u32 s35, s34, {YP}")
    a(f"v_lshlrev_b32 v{GA}, 15, v28\nv_lshl_add_u32 v{GA}, v29, 4, v{GA}\nv_add_u32 v{GA}, s35, v{GA}\nv_add_u32 v{GB}, 16384, v{GA}")
    a(f"s_add_u32 s35, s35, 512\nv_lshlrev_b32 v{GC}, 14, v2\nv_add3_u32 v{GC}, v{GC}, v3, s35")
    a(f"s_lshl_b32 s35, s26, 3\nv_mov_b32 v{SA}, s35")
    a(f"s_mul_i32 s35, s26, 768\nv_mul_u32_u24 v{F1W}, 192, v28\nv_lshl_add_u32 v{F1W}, v30, 5, v{F1W}\nv_add_u32 v{F1W}, s35, v{F1W}")
    a(f"v_mul_u32_u24 v{F1R}, 12, v3\nv_lshl_add_u32 v{F1R}, v2, 4, v{F1R}")
    a(f"s_lshl_b32 s35, s42, 14\ns_add_u32 s35, s35, s53\ns_add_u32 s35, s35, {FP + 3072}\nv_lshl_add_u32 v{Z0}, v0, 4, s35")
    a(f"v_or_b32 v{M0}, v4, v6\nv_or_b32 v{M0+1}, v5, v7\nv_bfe_u32 v{CM}, v0, 3, 1\nv_add_u32 v{CM}, -1, v{CM}")
    a("s_mul_i32 s43, s26, 5\ns_sub_u32 s43, s42, s43\ns_and_b32 s44, s43, 1\ns_lshl_b32 s44, s44, 3\ns_lshl_b32 s44, 0x00ff00ff, s44")
    a("s_lshr_b32 s35, s43, 1\ns_cmp_eq_u32 s35, 1\ns_cselect_b64 s[50:51], -1, 0\ns_cmp_eq_u32 s35, 2\ns_cselect_b64 s[48:49], -1, 0")
    a("s_waitcnt vmcnt(18)")
    for k in range(3):
        a(f"v_lshlrev_b32 v{X+k}, 16, v{X+k}")
    a("s_and_b32 s36, s40, -2")
    poll_head("L_f2")
    a("v_xor_b32 v22, s36, v22\nv_cmp_lt_u32 vcc, 1, v22\ns_cbranch_vccz L_f2_ok")
    a("global_load_dword v22, v1, s[24:25] sc1\ns_waitcnt vmcnt(0)\ns_sub_u32 s41, s41, 1\ns_cbranch_scc0 L_f2\nL_f2_ok:")
    a("v_cmp_ne_u32 vcc, 0, v22\ns_mov_b32 s45, vcc_lo")
    a("v_and_b32 v36, 1, v28\nv_lshlrev_b32 v36, 2, v36\nv_and_b32 v37, 2, v28\nv_add_u32 v36, v36, v37\nv_lshl_add_u32 v36, v30, 3, v36")
    a(f"s_lshl_b32 s35, s42, 7\ns_add_u32 s35, s35, {FP}\nv_lshl_add_u32 v36, v36, 2, s35\ns_lshl_b32 s34, s26, 1\nv_bfe_u32 v37, v0, 2, 1\nv_add_u32 v37, s34, v37")
    for m in range(3):
        a(f"v_lshrrev_b32 v38, v37, s45\nv_and_b32 v38, 1, v38\nv_lshl_add_u32 v38, v37, 1, v38\nv_lshl_add_u32 v{FPA+m}, v38, 13, v36")
        if m < 2:
            a("v_add_u32 v37, 8, v37")

    def yloads():
        for st in range(2):
            for k in range(4):
                r = G + 16 * st + 4 * k
                a(f"global_load_dwordx4 v[{r}:{r+3}], v{GA if k < 2 else GB}, s[24:25] offset:{2560*(k%2)+256*st} sc1")
        for k in range(2):
            a(f"global_load_dwordx4 v[{G+32+4*k}:{G+35+4*k}], v{GC}, s[24:25] offset:{2560*k} sc1")

    yloads()
    a("s_waitcnt vmcnt(10)")
    stamp(3)
    for p in range(5):
        for e in range(2):
            a(f"v_swap_b32 v{W1+8*p+2+e}, v{W1+8*p+4+e}")
    a(f"s_mov_b32 s41, {cap}")
    a("s_branch L_py_in")
    a("L_py:")
    if sl2:
        a(f"s_sleep {sl2}")
    yloads()
    a("L_py_in:")
    poll_count("L_py")
    for st, w in ((0, 6), (1, 2)):
        a(f"s_waitcnt vmcnt({w})")
        for p, q in ((0, 4), (2, 6), (8, 12), (10, 14), (0, 8), (2, 10)):
            pk(G + 16 * st + p, G + 16 * st + q)
    a(f"v_pk_add_f32 v[36:37], v[{G}:{G+1}], v[{G+2}:{G+3}]\nv_pk_add_f32 v[38:39], v[{G+16}:{G+17}], v[{G+18}:{G+19}]")
    a("s_waitcnt vmcnt(0)")
    pk(G + 32, G + 36)
    pk(G + 34, G + 38)
    pk(36, G + 32)
    pk(38, G + 34)
    pk(36, 38)
    a("v_cmp_u_f32 vcc, v36, v37\ns_and_b64 exec, exec, vcc\ns_cbranch_scc1 L_py")
    a("L_py_ok:")
    exec_all()
    stamp(10)
    SET = (G, G + 16, G + 32)
    for r in SET:
        a(f"v_permlane32_swap_b32 v{r}, v{r+2}\nv_permlane32_swap_b32 v{r+1}, v{r+3}")
    for r in (SET[2], SET[0], SET[1]):
        pk(r, r + 2)
    for r in (SET[2], SET[0], SET[1]):
        a(f"v_permlane16_swap_b32 v{r}, v{r+1}")
    for r in (SET[2], SET[0], SET[1]):
        a(f"v_add_f32 v{r}, v{r}, v{r+1}")
    a(f"v_add_f32_dpp v{SET[2]}, v{SET[2]}, v{SET[2]} row_ror:8 {DM}")
    for r in SET:
        a(f"v_cvt_pk_bf16_f32 v{r}, 0, v{r}")
    for k, r in enumerate(SET):
        a(f"v_add_f32 v{H+k}, v{X+k}, v{r}")
    for k in range(3):
        a(f"v_cvt_pk_bf16_f32 v{H+k}, 0, v{H+k}")
    a(f"v_add_f32 v{G}, v{H}, v{H+1}\nv_mul_f32 v{G+1}, v{H}, v{H}\nv_and_b32 v36, v{CM}, v{H+2}\nv_fmac_f32 v{G+1}, v{H+1}, v{H+1}\nv_add_f32 v{G}, v{G}, v36\nv_fmac_f32 v{G+1}, v36, v36")
    fill = [f"v_cndmask_b32 v{HF}, v{H}, v{H+1}, s[50:51]", f"v_cndmask_b32 v{HF}, v{HF}, v{H+2}, s[48:49]",
            f"v_mov_b32_dpp v{H+2}, v{H+2} quad_perm:[2,3,0,1] row_mask:0xf bank_mask:0xc"]
    for ctl in (f"quad_perm:[1,0,3,2] {DM}", f"quad_perm:[2,3,0,1] {DM}", f"row_half_mirror {DM}") + HI:
        if fill:
            a(fill.pop(0))
        for r in (G, G + 1):
            a(f"v_add_f32_dpp v{r}, v{r}, v{r} {ctl}")
    a(f"s_lshl_b64 exec, 1, 63\nds_write_b64 v{SA}, v[{G}:{G+1}] offset:{LST}")
    exec_all()
    a("s_waitcnt lgkmcnt(0)\ns_barrier")
    a(f"ds_read_b128 v[{G}:{G+3}], v{ZR} offset:{LST}\nds_read_b128 v[{G+4}:{G+7}], v{ZR} offset:{LST+16}")
    a("s_waitcnt lgkmcnt(0)")
    pk(G, G + 2)
    pk(G + 4, G + 6)
    pk(G, G + 4)
    ln_scalars(G, G + 1, G + 2, G + 3)
    for k in range(3):
        a(f"v_sub_f32 v{G+4+k}, v{H+k}, v{G+2}")
    for k in range(3):
        a(f"v_cvt_pk_bf16_f32 v{G+4+k}, 0, v{G+4+k}")
    for k in range(3):
        a(f"v_mul_f32 v{G+4+k}, v{G+4+k}, v{G+3}")
    for k in range(3):
        a(f"v_cvt_pk_bf16_f32 v{G+4+k}, v{G+4+k}, v{G+4+k}")
    stamp(11)

    def quad_frag(p):
        for e in range(2):
            i = (2 * p + e) % 4
            for r in range(2):
                a(f"v_and_b32_dpp v{AF+4*p+2*e+r}, v{G+4+p//2}, v{M0+r} quad_perm:[{i},{i},{i},{i}] {DM}")

    quad_frag(0)
    for p in range(5):
        if p < 4:
            quad_frag(p + 1)
        for hf in range(2):
            mfma(AC2 + 4 * hf, AF + 4 * p, W1 + 8 * p + 4 * hf, p == 0)
    a("s_mov_b32 exec_lo, 0x00f0000f\ns_mov_b32 exec_hi, 0xf0000f00")
    a(f"ds_write_b128 v{F1W}, v[{AC2}:{AC2+3}] offset:{LF1}\nds_write_b128 v{F1W}, v[{AC2+4}:{AC2+7}] offset:{LF1+16}")
    exec_all()
    a("s_waitcnt lgkmcnt(0)\ns_barrier")
    for k in range(2):
        a(f"ds_read_b128 v[{HD+4*k}:{HD+4*k+3}], v{F1R} offset:{LF1+1536*k}")
    a("s_waitcnt lgkmcnt(0)")
    pk(HD, HD + 4)
    pk(HD + 2, HD + 6)
    red8("v_add_f32", range(HD, HD + 4))
    for i in range(4):
        a(f"v_max_f32 v{HD+i}, 0, v{HD+i}")
    for i in range(4):
        a(f"v_cvt_pk_bf16_f32 v{HD+i}, v{HD+i}, v{HD+i}")
    stamp(12)
    afrag(AF, HD)
    for i in range(4):
        if i < 3:
            afrag(AF + 4 * i + 4, HD + i + 1)
        mfma(AC2, AF + 4 * i, W2[0] + 4 * i, i == 0)
    for m in (1, 2):
        for i in range(4):
            mfma(AC2 + 4 * m, AF + 4 * i, W2[m] + 4 * i, i == 0)
    eo_combine(AC2)
    a("s_cmp_lt_u32 s26, 2")
    eo_combine(AC2 + 4)
    eo_combine(AC2 + 8)
    exec_rep("0x00ff00ff")
    a(f"global_store_dwordx2 v{FPA}, v[{AC2}:{AC2+1}], s[24:25] sc1")
    a(f"global_store_dwordx2 v{FPA+1}, v[{AC2+4}:{AC2+5}], s[24:25] sc1")
    a("s_cbranch_scc0 L_two")
    a(f"global_store_dwordx2 v{FPA+2}, v[{AC2+8}:{AC2+9}], s[24:25] sc1")
    a("L_two:")
    exec_all()
    stamp(13)
    a("s_cmp_lt_u32 s43, 5\ns_cbranch_scc0 L_notfinal")
    a(f"s_mov_b32 s41, {cap}")
    a("s_waitcnt vmcnt(0)")
    a("L_pz:")
    for k in range(6):
        a(f"global_load_dwordx4 v[{G+4*k}:{G+4*k+3}], v{Z0}, s[24:25] offset:{1024*k-3072} sc1")
    poll_count("L_pz")
    for k in range(1, 6):
        a(f"s_waitcnt vmcnt({5-k})")
        pk(G, G + 4 * k)
        pk(G + 2, G + 4 * k + 2)
    a(f"v_pk_add_f32 v[36:37], v[{G}:{G+1}], v[{G+2}:{G+3}]")
    a("v_cmp_u_f32 vcc, v36, v37\ns_and_b64 exec, exec, vcc\ns_cbranch_scc1 L_pz")
    a("L_pz_ok:")
    exec_all()
    a(f"v_permlane32_swap_b32 v{G}, v{G+2}\nv_permlane32_swap_b32 v{G+1}, v{G+3}")
    pk(G, G + 2)
    a(f"v_permlane16_swap_b32 v{G}, v{G+1}\nv_add_f32 v{G}, v{G}, v{G+1}")
    a(f"v_add_f32_dpp v{G}, v{G}, v{G} row_ror:8 {DM}")
    a(f"v_cvt_pk_bf16_f32 v{G}, 0, v{G}\nv_add_f32 v{G}, v{HF}, v{G}\nv_cvt_pk_bf16_f32 v{G}, v{G}, v{G}")
    exec_rep("s44")
    a(f"global_store_short v{OA}, v{G}, s[20:21]")
    stamp(14)
    a("L_fin3:")
    finish()
    giveup("L_py")
    giveup("L_pz")
    a("L_notfinal:")
    a("s_cmp_eq_u32 s43, 47\ns_cbranch_scc0 L_fin3")
    a(f"v_mov_b32 v37, s40\ns_mov_b64 exec, 1\nglobal_store_dword v{ZR}, v37, s[24:25] offset:{EPOCH} sc1")
    finish()
    far_store("ffn")
    if diag:
        a("L_stamps:")
        a("s_waitcnt vmcnt(0)")
        stamp(15)
        a("s_sleep 127\ns_sleep 127\ns_sleep 127\ns_branch L_stamps_out")
        a("L_stamps_now:")
        stamp(15)
        a("L_stamps_out:")
        exec_all()
        a("s_waitcnt lgkmcnt(0)")
        a(f"s_mul_i32 s34, s2, 10\ns_add_u32 s34, s34, s26\ns_lshl_b32 s34, s34, 7\ns_add_u32 s34, s34, {STAMP}\nv_lshl_add_u32 v36, v0, 2, s34")
        for k in range(32):
            a(f"v_writelane_b32 v40, s{64+k}, {k}")
        a("s_mov_b32 exec_hi, 0")
        a("global_store_dword v36, v40, s[24:25]")
    a("L_end:")
    a("s_endpgm")
    a("L_code_end:")
    a.raw(f""".section .rodata,"a"
.p2align 6
.amdhsa_kernel {NAME}_kernel
  .amdhsa_next_free_vgpr 168
  .amdhsa_next_free_sgpr 96
  .amdhsa_accum_offset 168
  .amdhsa_group_segment_fixed_size 0
  .amdhsa_kernarg_size 88
  .amdhsa_user_sgpr_count 2
  .amdhsa_user_sgpr_kernarg_segment_ptr 1
  .amdhsa_system_sgpr_workgroup_id_x 1
  .amdhsa_float_denorm_mode_32 3
.end_amdhsa_kernel""")
    return a.text()


if __name__ == "__main__":
    import json
    out = sys.argv[1]
    kw = json.loads(sys.argv[2]) if len(sys.argv) > 2 else {}
    open(out, "w").write(gen(**kw))
```
